```python
import torch

def _softmax(x, axis=-1):
    return torch.softmax(x, dim=axis)
def _gelu(x):
    return torch.nn.functional.gelu(x, approximate="tanh")
def _silu(x):
    return torch.nn.functional.silu(x)
def _sigmoid(x):
    return torch.sigmoid(x)
def _layernorm(x, axis=-1, eps=1e-5):
    m = x.mean(dim=axis, keepdim=True)
    v = x.var(dim=axis, keepdim=True, unbiased=False)
    return (x - m) / torch.sqrt(v + eps)
def _scatter_add(tgt, idx, src, axis=0):
    return tgt.clone().index_add_(axis, idx, src)
def _segment_sum(src, seg, n):
    out = torch.zeros((n,) + src.shape[1:], dtype=src.dtype)
    return out.index_add_(0, seg, src)
def _pad(x, pw):
    flat = tuple(v for pair in reversed(pw) for v in pair)
    return torch.nn.functional.pad(x, flat)

kernel_name = 'concat_heads__sliding_block__ssm_conv_h3__prompt'

def setup_inputs():

    _w = (lambda a: (lambda t: t.to(torch.bfloat16) if t.is_floating_point() else t)(torch.as_tensor(a)))
    def _A_setup():
        B, S, D = 1, 2048, 576
        return {
            "x": _w((lambda *s: torch.randn(*s, dtype=torch.bfloat16) * 0.2)(B, S, D)),
            "wqkv": _w((lambda *s: torch.randn(*s, dtype=torch.bfloat16) * 0.2)(D, 3 * D)),
            "wo": _w((lambda *s: torch.randn(*s, dtype=torch.bfloat16) * 0.05)(D, D)),
        }
    _A_in = _A_setup()

    def _B_setup():
        B, S, D = 1, 2048, 576
        ks = 4
        return {
            "q": _w((lambda *s: torch.randn(*s, dtype=torch.bfloat16) * 0.05)(B, S, D)),
            "k": _w((lambda *s: torch.randn(*s, dtype=torch.bfloat16) * 0.8)(B, S, D)),
            "v": _w((lambda *s: torch.randn(*s, dtype=torch.bfloat16) * 0.8)(B, S, D)),
            "shift_k": _w((lambda *s: torch.randn(*s, dtype=torch.bfloat16) * 0.8)(D, ks) * 0.5),
            "ssm_k": _w((lambda *s: torch.randn(*s, dtype=torch.bfloat16) * 3.2)(D, S) * (1.0 / S ** 0.5)),
            "ssm_D": _w((lambda *s: torch.randn(*s, dtype=torch.bfloat16) * 0.8)(D)),
        }
    _B_in = _B_setup()

    return {
        "A_x": _A_in["x"],
        "A_wqkv": _A_in["wqkv"],
        "A_wo": _A_in["wo"],
        "B_q": _B_in["q"],
        "B_k": _B_in["k"],
        "B_v": _B_in["v"],
        "B_shift_k": _B_in["shift_k"],
        "B_ssm_k": _B_in["ssm_k"],
        "B_ssm_D": _B_in["ssm_D"],
    }

def reference(A_x, A_wqkv, A_wo, B_q, B_k, B_v, B_shift_k, B_ssm_k, B_ssm_D):
    def _A_ref(x, wqkv, wo):
        B, S, D = x.shape
        H = 32; Dh = D // H; W = 256
        qkv = (lambda x, *d: x.permute(*d))((x @ wqkv).reshape(B, S, 3, H, Dh), 2, 0, 3, 1, 4)
        q, k, v = qkv[0], qkv[1], qkv[2]
        scores = torch.einsum("bhqd,bhkd->bhqk", q, k) * (Dh ** -0.5)
        idx = torch.arange(S)
        mask = (idx[:, None] - idx[None, :] >= 0) & (idx[:, None] - idx[None, :] < W)
        scores = torch.where(mask[None, None], scores, -1e9)
        p = _softmax(scores, axis=-1)
        o = torch.einsum("bhqk,bhkd->bhqd", p, v)
        return (lambda x, *d: x.permute(*d))(o, 0, 2, 1, 3).reshape(B, S, D) @ wo

    def _B_ref(q, k, v, shift_k, ssm_k, ssm_D):
        B, S, D = q.shape
        ks = shift_k.shape[-1]
        k_pad = _pad(k, ((0, 0), (ks - 1, 0), (0, 0)))
        k_shift = torch.zeros_like(k)
        for t in range(ks):
            k_shift = k_shift + k_pad[:, t:t + S, :] * shift_k[:, ks - 1 - t][None, None, :]
        kv = k_shift * v
        L = 2 * S
        kv_pad = _pad(kv, ((0, 0), (0, S), (0, 0)))
        kf_pad = _pad(ssm_k, ((0, 0), (0, S)))
        kv_f = (lambda x, axes=(-2,-1): torch.fft.rfft2(x.float(), dim=axes))(kv_pad[:, None, :, :], axes=(1, 2))
        kf_f = (lambda x, axes=(-2,-1): torch.fft.rfft2(x.float(), dim=axes))(kf_pad[:, None, :], axes=(1, 2))
        kf_f = (lambda x, *d: x.permute(*d))(kf_f, 1, 2, 0)
        y_f = kv_f * kf_f[None, :, :, :]
        y = (lambda x, s, axes=(-2,-1): torch.fft.irfft2(x, s=s, dim=axes).to(torch.bfloat16))(y_f, (1, L), axes=(1, 2))[:, 0, :S, :]
        y = y + kv * ssm_D[None, None, :]
        return q * y

    a = _A_ref(A_x, A_wqkv, A_wo)
    b = _B_ref(B_q, B_k, B_v, B_shift_k, B_ssm_k, B_ssm_D)
    return torch.concatenate([a, b], axis=-1)
```

```python
import re

def v(a, n=1):
    return f"v{a}" if n == 1 else f"v[{a}:{a+n-1}]"
def s(a, n=1):
    return f"s{a}" if n == 1 else f"s[{a}:{a+n-1}]"
def acc(a, n=1):
    return f"a{a}" if n == 1 else f"a[{a}:{a+n-1}]"

_REG = re.compile(r"^(-|abs\()?\|?([vsa])(\d+|\[(\d+):(\d+)\])\|?\)?$")
TRANS = ("v_exp_f32", "v_log_f32", "v_rcp_f32", "v_rsq_f32", "v_sqrt_f32", "v_sin_f32", "v_cos_f32", "v_rcp_iflag_f32",
         "v_exp_f16", "v_rcp_f16")

def regs_of(tok):
    tok = tok.strip()
    if tok == "vcc": return {("s", 106), ("s", 107)}
    if tok == "vcc_lo": return {("s", 106)}
    if tok == "vcc_hi": return {("s", 107)}
    if tok == "exec": return {("s", 126), ("s", 127)}
    if tok == "exec_lo": return {("s", 126)}
    if tok == "exec_hi": return {("s", 127)}
    if tok == "m0": return {("s", 124)}
    m = _REG.match(tok)
    if not m: return set()
    k = m.group(2)
    if m.group(4) is not None:
        return {(k, i) for i in range(int(m.group(4)), int(m.group(5)) + 1)}
    return {(k, int(m.group(3)))}

def split_ops(rest):
    out = []; depth = 0; cur = ""
    for ch in rest:
        if ch in "[(": depth += 1
        if ch in "])": depth -= 1
        if ch == "," and depth == 0:
            out.append(cur.strip()); cur = ""
        else:
            cur += ch
    if cur.strip(): out.append(cur.strip())
    return out

class Ins:
    __slots__ = ("text", "mn", "ops", "kind", "wr", "rd", "passes", "srcc", "srcab", "states", "label", "target", "mods", "sdata")
    def __init__(self, text):
        self.text = text
        t = text.split(";")[0].strip()
        self.label = None; self.target = None
        self.wr = set(); self.rd = set(); self.passes = 0; self.srcc = set(); self.srcab = set(); self.sdata = set()
        self.states = 1; self.kind = "other"; self.mods = ""
        if t.endswith(":"):
            self.label = t[:-1]; self.mn = ""; self.ops = []; self.kind = "label"; self.states = 0; return
        if not t or t.startswith("."):
            self.mn = ""; self.ops = []; self.kind = "dir"; self.states = 0; return
        p = t.split(None, 1)
        self.mn = mn = p[0]
        rest = p[1] if len(p) > 1 else ""
        ops = split_ops(rest)
        if ops:
            lp = ops[-1].split()
            if len(lp) > 1 and not ops[-1].startswith("hwreg") :
                self.mods = " ".join(lp[1:]); ops[-1] = lp[0]
        self.ops = ops
        R = [regs_of(o) for o in ops]
        base = re.sub(r"_(e32|e64|dpp|sdwa)$", "", mn)
        if mn.startswith("v_mfma"):
            self.kind = "mfma"
            self.wr = R[0]; self.srcab = R[1] | R[2]; self.srcc = R[3]; self.rd = self.srcab | self.srcc
            self.passes = 8 if "32x32" in mn else 4
        elif mn.startswith("v_"):
            self.kind = "trans" if base in TRANS else "valu"
            if base.startswith("v_cmpx"):
                self.wr = R[0] | regs_of("exec"); self.rd = set().union(*R[1:])
            elif base.startswith("v_cmp"):
                self.wr = R[0]; self.rd = set().union(*R[1:])
            elif base in ("v_add_co_u32", "v_sub_co_u32", "v_subrev_co_u32", "v_addc_co_u32", "v_subb_co_u32", "v_mad_u64_u32"):
                self.wr = R[0] | R[1]; self.rd = set().union(*R[2:])
            elif base.startswith("v_permlane") and "swap" in base:
                self.wr = R[0] | R[1]; self.rd = R[0] | R[1]
            elif base == "v_nop":
                pass
            else:
                self.wr = R[0]; self.rd = set().union(*R[1:]) if len(R) > 1 else set()
                if base in ("v_fmac_f32", "v_dot2c_f32_bf16", "v_writelane_b32", "v_pk_fmac_f16") or "dpp" in mn or "sdwa" in mn or "row_" in self.mods or "quad_perm" in self.mods:
                    self.rd |= R[0]
                if base == "v_cndmask_b32" and len(ops) == 3:
                    self.rd |= regs_of("vcc")
        elif mn.startswith("buffer_") or mn.startswith("global_"):
            self.kind = "vmem"
            lds = " lds" in (" " + self.mods) or "_lds_" in mn
            if "store" in mn or "atomic" in mn:
                self.rd = set().union(*R)
                self.sdata = R[0] if mn.startswith("buffer_") else R[1]
                if not ("x3" in mn or "x4" in mn): self.sdata = set()
            elif lds:
                self.rd = set().union(*R) | regs_of("m0")
            else:
                self.wr = R[0]; self.rd = set().union(*R[1:])
        elif mn.startswith("ds_"):
            self.kind = "ds"
            if ("write" in mn or mn in ("ds_min_u32", "ds_max_u32", "ds_add_u32")) and "rtn" not in mn:
                self.rd = set().union(*R)
            else:
                self.wr = R[0]; self.rd = set().union(*R[1:])
        elif mn.startswith("s_load") or mn.startswith("s_buffer_load") or mn in ("s_memtime", "s_memrealtime"):
            self.kind = "smem"; self.wr = R[0]; self.rd = set().union(*R[1:]) if len(R) > 1 else set()
        elif mn == "s_nop":
            self.kind = "nop"; self.states = int(ops[0], 0) + 1
        elif mn.startswith("s_cbranch") or mn == "s_branch":
            self.kind = "branch"; self.target = ops[0]
        elif mn in ("s_waitcnt", "s_barrier", "s_endpgm", "s_setprio", "s_sleep"):
            self.kind = "other"
        elif mn.startswith("s_"):
            self.kind = "salu"
            if mn.startswith("s_cmp") or mn.startswith("s_bitcmp"):
                self.rd = set().union(*R)
            else:
                self.wr = R[0]; self.rd = set().union(*R[1:]) if len(R) > 1 else set()
                if "saveexec" in mn:
                    self.wr |= regs_of("exec"); self.rd |= regs_of("exec")

def isv(rs): return {r for r in rs if r[0] in "va"}
def iss(rs): return {r for r in rs if r[0] == "s"}
EXEC = regs_of("exec"); M0 = regs_of("m0")

def need(p, c):
    n = 0
    pv = p.kind in ("valu", "trans")
    cv = c.kind in ("valu", "trans")
    cbase = re.sub(r"_(e32|e64|dpp|sdwa)$", "", c.mn)
    if pv:
        wv = isv(p.wr); ws = iss(p.wr)
        if c.kind == "mfma" and wv & c.rd: n = max(n, 2)
        if c.kind == "mfma" and ws & EXEC: n = max(n, 4)
        if c.kind == "vmem" and ws & iss(c.rd): n = max(n, 5)
        if cv and (ws - EXEC) & iss(c.rd): n = max(n, 2)
        if cbase in ("v_readlane_b32", "v_writelane_b32") and ws & iss(c.rd): n = max(n, 4)
        if cbase in ("v_readlane_b32", "v_readfirstlane_b32", "v_writelane_b32") and ws & EXEC: n = max(n, 4)
        if cbase in ("v_readlane_b32", "v_readfirstlane_b32") and wv & c.rd: n = max(n, 1)
        if cbase.startswith("v_permlane") and wv & c.rd: n = max(n, 2)
        if cbase.startswith("v_permlane") and ws & EXEC: n = max(n, 4)
        isdpp = cv and ("dpp" in c.mn or "row_" in c.mods or "quad_perm" in c.mods or "wave_" in c.mods)
        if isdpp and wv & c.rd: n = max(n, 2)
        if isdpp and ws & EXEC: n = max(n, 5)
        if p.kind == "trans" and c.kind in ("valu", "mfma", "vmem", "ds") and wv & c.rd: n = max(n, 1)
        if ("sdwa" in p.mn or "op_sel" in p.mods) and cv and wv & (c.rd | c.wr): n = max(n, 1)
        if p.mn.startswith("v_dot") and (cv or c.kind in ("mfma", "vmem", "ds")) and wv & (c.rd | c.wr):
            same_c = (c.mn == p.mn) and not (wv & (regs_of(c.ops[1]) | regs_of(c.ops[2])))
            if not same_c: n = max(n, 3)
        if c.kind in ("salu", "smem") and ws & iss(c.rd): n = max(n, 1)
    if p.kind == "salu":
        if (p.wr & M0) and c.kind == "vmem" and (c.rd & M0): n = max(n, 1)
    if p.kind == "vmem" and p.sdata:
        if cv and p.sdata & c.wr: n = max(n, 2)
        elif p.sdata & c.wr: n = max(n, 1)
    if p.kind == "mfma":
        idx = {4: 1, 8: 2}[p.passes]
        D = p.wr
        if c.kind == "mfma":
            if D & c.srcab: n = max(n, (5, 8, 12, 20)[idx])
            if D & c.srcc:
                if D == c.srcc and c.passes == p.passes: pass
                else: n = max(n, (4, 6, 10, 18)[idx])
            elif D & c.wr:
                n = max(n, (4, 6, 10, 18)[idx])
        elif cv:
            if D & (c.rd | c.wr): n = max(n, (5, 8, 12, 20)[idx])
            if p.srcc & c.wr: n = max(n, (1, 3, 7, 15)[idx])
        elif c.kind in ("vmem", "ds"):
            if D & (c.rd | c.wr): n = max(n, (5, 8, 12, 20)[idx])
            if p.srcc & c.wr: n = max(n, (1, 3, 7, 15)[idx])
    return n

class Asm:
    def __init__(self):
        self.L = []
        self.nops = []
    stf = ""
    def __call__(self, text):
        for t in text.split("\n"):
            t = t.strip()
            if t.startswith("buffer_store") and self.stf: t += " " + self.stf
            if t: self.L.append(Ins(t))
    def label(self, name): self(name + ":")
    def comment(self, c): self.L.append(Ins("; " + c))
    def fix(self, verbose=False):
        changed = True; total = 0
        while changed:
            changed = False
            L = self.L
            labels = {x.label: i for i, x in enumerate(L) if x.label}
            srcs = {}
            for i, x in enumerate(L):
                if x.target is not None and x.target in labels:
                    srcs.setdefault(labels[x.target], []).append(i)
            for i, c in enumerate(L):
                if c.kind in ("label", "dir", "nop", "branch", "other"): continue
                worst = 0
                stack = [(i - 1, 0)]; seen = {}
                while stack:
                    j, d = stack.pop()
                    if j < 0 or d >= 20: continue
                    if j in seen and seen[j] <= d: continue
                    seen[j] = d
                    p = L[j]
                    if p.mn in ("s_endpgm",): continue
                    if p.kind == "label":
                        for b in srcs.get(j, []):
                            stack.append((b - 1, d + 1))
                        k = j - 1
                        while k >= 0 and L[k].kind == "dir": k -= 1
                        if k >= 0 and L[k].mn not in ("s_branch", "s_endpgm"):
                            stack.append((j - 1, d))
                        continue
                    r = need(p, c) - d
                    if r > worst: worst = r; why = p
                    stack.append((j - 1, d + p.states))
                if worst > 0:
                    if verbose: print(f"nop {worst}: [{why.text}] -> [{c.text}]")
                    k = worst
                    ins = []
                    while k > 0:
                        q = min(k, 16); ins.append(Ins(f"s_nop {q-1}")); k -= q
                    L[i:i] = ins
                    total += worst
                    changed = True
                    break
        return total
    def text(self):
        out = []
        for x in self.L:
            out.append(x.text if x.kind in ("label",) or x.text.startswith(".") else "    " + x.text)
        return "\n".join(out) + "\n"
    def maxregs(self):
        mv = ma = ms = -1
        for x in self.L:
            for k, r in x.wr | x.rd:
                if k == "v": mv = max(mv, r)
                elif k == "a": ma = max(ma, r)
                elif r < 106: ms = max(ms, r)
        return mv + 1, ma + 1, ms + 1

def kernel_text(name, a, verbose=False):
    n = a.fix(verbose)
    nv, na, ns = a.maxregs()
    accum = max(4, (nv + 3) // 4 * 4)
    nfv = accum + na if na else nv
    code = f".globl {name}\n.p2align 8\n.type {name},@function\n{name}:\n" + a.text()
    desc = f""".p2align 6
.amdhsa_kernel {name}
  .amdhsa_next_free_vgpr {nfv}
  .amdhsa_next_free_sgpr {max(ns, 16)}
  .amdhsa_accum_offset {accum}
  .amdhsa_group_segment_fixed_size 0
  .amdhsa_kernarg_size 96
  .amdhsa_user_sgpr_count 2
  .amdhsa_user_sgpr_kernarg_segment_ptr 1
  .amdhsa_system_sgpr_workgroup_id_x 1
.end_amdhsa_kernel
"""
    print(f"{name}: vgpr={nv} agpr={na} sgpr={ns} nops_inserted={n} instrs={sum(1 for x in a.L if x.mn)}")
    return code, desc
```

```python
import sys, math, struct
sys.path.insert(0, "dev")
from asmlib import *

def f32bits(x): return struct.unpack("<I", struct.pack("<f", x))[0]

TSQ = 1152
TSKV = 2368
WS_Q = 0
WS_KV = 0x280000
WS_OM = 0x780000
WS_OT = 0x980000
WS_U = 0xA00000
WS_Y = 0xF00000
WS_END = 0x1200000
QSCALE = math.log2(math.e) / math.sqrt(18.0)

P_X, P_W, P_WO, P_BQ, P_BK, P_BV, P_SH, P_SK, P_SD, P_OUT, P_DBG, P_WS = [16 + 2 * i for i in range(12)]

def prologue(a):
    a("s_load_dwordx16 s[16:31], s[0:1], 0")
    a("s_load_dwordx8 s[32:39], s[0:1], 64")

def srd(a, d, p, nbytes, off=None):
    if off is None:
        a(f"s_mov_b32 s{d}, s{p}")
        a(f"s_mov_b32 s{d+1}, s{p+1}")
    else:
        a(f"s_add_u32 s{d}, s{p}, {off}")
        a(f"s_addc_u32 s{d+1}, s{p+1}, 0")
    a(f"s_mov_b32 s{d+2}, {nbytes}")
    a(f"s_mov_b32 s{d+3}, 0x00020000")

STAMP = "-stamp" in sys.argv
WS_ST = 0x2000000
class Stamps:
    def __init__(self, a, kidx, base=64, mx=16): self.a = a; self.n = 0; self.kidx = kidx; self.base = base; self.mx = mx
    def reset(self, n): self.n = n
    def __call__(self, real=False):
        if not STAMP: return
        assert self.n < self.mx
        self.a(f"{'s_memrealtime' if real else 's_memtime'} s[{self.base+2*self.n}:{self.base+1+2*self.n}]"); self.n += 1
    def flush(self, wave_sgpr, nw):
        if not STAMP: return
        a = self.a
        a("s_memrealtime s[96:97]")
        a("s_mov_b64 exec, -1")
        a("s_waitcnt lgkmcnt(0)")
        srd(a, 4, P_WS, 0x10000000)
        a(f"s_mul_i32 s98, s2, {nw}")
        a(f"s_add_u32 s98, s98, s{wave_sgpr}")
        a("s_lshl_b32 s98, s98, 7")
        a(f"s_add_u32 s98, s98, {WS_ST + self.kidx * 0x100000}")
        a("v_mov_b32 v0, 0")
        for i in range(self.n):
            a(f"v_mov_b32 v1, s{self.base+2*i}")
            a(f"buffer_store_dword v1, v0, s[4:7], s98 offen offset:{4*i}")
        a("v_mov_b32 v1, s96")
        a("buffer_store_dword v1, v0, s[4:7], s98 offen offset:64")
        a(f"v_mov_b32 v1, {self.n}")
        a("buffer_store_dword v1, v0, s[4:7], s98 offen offset:68")
        a("s_getreg_b32 s99, hwreg(HW_REG_HW_ID)")
        a("v_mov_b32 v1, s99")
        a("buffer_store_dword v1, v0, s[4:7], s98 offen offset:72")
        a("s_getreg_b32 s99, hwreg(HW_REG_XCC_ID)")
        a("v_mov_b32 v1, s99")
        a("buffer_store_dword v1, v0, s[4:7], s98 offen offset:76")

class VmTrack:
    def __init__(self, a): self.a = a; self.q = []
    def issue(self, text, tag):
        self.a(text); self.q.append(tag)
    def wait(self, tag, extra=""):
        idx = [i for i, t in enumerate(self.q) if t == tag]
        if not idx:
            if extra: self.a(f"s_waitcnt {extra}")
            return
        n = len(self.q) - 1 - idx[-1]
        assert n <= 63, n
        self.a(f"s_waitcnt vmcnt({n}) {extra}")
        self.q = self.q[idx[-1] + 1:]


class LgTrack:
    def __init__(self, a): self.a = a; self.q = []
    def issue(self, text, tag):
        self.a(text); self.q.append(tag)
        assert len(self.q) <= 15, "too many LDS ops in flight"
    def wait(self, *tags):
        idx = [i for i, t in enumerate(self.q) if t in tags]
        if not idx: return
        n = len(self.q) - 1 - idx[-1]
        self.a(f"s_waitcnt lgkmcnt({n})")
        self.q = self.q[idx[-1] + 1:]
    def drain(self):
        if self.q: self.a("s_waitcnt lgkmcnt(0)")
        self.q = []

NB1 = 4
CW1 = 18432
CH1 = CW1 + 16384

def k1_loader(a, st):
    a("s_mul_i32 s8, s3, 4608")
    a("s_lshl_b32 s12, s3, 12")
    a(f"s_add_u32 s12, s12, {CW1}")
    a("s_mov_b32 s10, -1")
    a("s_mov_b32 s11, 0")
    a("s_lshl_b32 s14, s3, 4")
    for j in range(5):
        r = 4 + j
        a(f"v_add_u32 v16, {64*j}, v1")
        a("v_mul_u32_u24 v17, 57, v16")
        a("v_lshrrev_b32 v17, 10, v17")
        a("v_mul_u32_u24 v18, 18, v17")
        a("v_sub_u32 v18, v16, v18")
        a("v_and_b32 v19, 3, v17")
        a("v_and_b32 v20, 4, v17")
        a("v_lshl_or_b32 v19, v20, 1, v19")
        a("v_and_b32 v20, 8, v17")
        a("v_lshrrev_b32 v20, 1, v20")
        a("v_or_b32 v19, v19, v20")
        a("v_add_u32 v19, s14, v19")
        a("v_mul_u32_u24 v19, 3456, v19")
        a("v_lshl_add_u32 v19, v18, 4, v19")
        a(f"v_add_u32 v{r}, s7, v19")
        if 0 < j < 4: a(f"v_subrev_u32 v{r}, {1024*j}, v{r}")
    for u in range(288): assert (u * 57) >> 10 == u // 18, u
    a("v_lshrrev_b32 v16, 3, v1")
    a("v_lshrrev_b32 v17, 2, v16")
    a("v_lshlrev_b32 v17, 3, v17")
    a("v_and_b32 v18, 3, v16")
    a("v_add_u32 v17, v17, v18")
    a("s_lshl_b32 s14, s6, 5")
    a("v_add_u32 v17, s14, v17")
    a("v_mul_u32_u24 v17, 1152, v17")
    a("v_lshrrev_b32 v18, 4, v1")
    a("v_xor_b32 v18, v18, v1")
    a("v_and_b32 v18, 7, v18")
    a("v_xor_b32 v19, 4, v18")
    a("v_lshl_add_u32 v18, v18, 4, v17")
    a("v_lshl_add_u32 v19, v19, 4, v17")
    for j in range(4):
        srow = 16 * (j & 1) + 4 * (j >> 1)
        a(f"v_add_u32 v{9+j}, {srow*1152 - 1024*j}, v{18 + (j&1)}")
    a("s_waitcnt lgkmcnt(0)")
    srd(a, 40, P_X, 2048 * 1152)
    srd(a, 44, P_W, 576 * 3456)
    vm = VmTrack(a)
    def issue(c):
        slot = c % NB1
        a(f"s_add_u32 m0, s8, {slot*CH1}")
        a(f"s_mov_b32 s9, {c*64*3456}")
        for j in range(4):
            vm.issue(f"buffer_load_dwordx4 v{4+j}, s[44:47], s9 offen offset:{j*1024} lds", c)
        a(f"s_add_u32 m0, s8, {slot*CH1+4096}")
        a("s_mov_b64 exec, s[10:11]")
        vm.issue(f"buffer_load_dwordx4 v8, s[44:47], s9 offen lds", c)
        a("s_mov_b64 exec, -1")
        a(f"s_add_u32 m0, s12, {slot*CH1}")
        a(f"s_movk_i32 s9, {c*128}")
        for j in range(4):
            vm.issue(f"buffer_load_dwordx4 v{9+j}, s[40:43], s9 offen offset:{j*1024} lds", c)
    st()
    issue(0); issue(1)
    st()
    for c in range(9):
        vm.wait(c); st(); a("s_barrier")
        if c + 2 < 9: issue(c + 2)
    st(); st.flush(15, 8)
    a("s_endpgm")

def k1_gemm(a, variant, st):
    XB = 16
    WB = XB + 16
    AB = WB + 36
    lg = LgTrack(a)
    def xreg(gk, F): return XB + ((gk & 1) * 2 + F) * 4
    def accr(t, F): return AB + (t * 2 + F) * 4
    def reads(gf):
        c, f = divmod(gf, 18)
        ks, t = divmod(f, 9)
        slot = c % NB1
        hi = 4 if slot >= 2 else 0
        so = (slot & 1) * CH1
        out = []
        if t == 0:
            for F in range(2):
                out.append((f"ds_read_b128 {v(xreg(c*2+ks,F),4)}, v{4+ks+hi} offset:{so + 2048*F}", gf))
        if variant == "qk":
            if t < 8: base, co = 2 + hi, 72 * (t >> 1) + 8 * (t & 1)
            else: base, co = 3 + hi, 32
        else:
            base, co = 2 + hi, 32 * t
        r = WB + (gf % 9) * 4
        for rr in range(2):
            out.append((f"ds_read_b64_tr_b16 {v(r+2*rr,2)}, v{base} offset:{so + (32*ks+8*rr)*288 + co}", gf))
        return out
    D = 6
    st()
    a("s_barrier")
    st()
    for gf in range(D):
        for t_, tag in reads(gf): lg.issue(t_, tag)
    for c in range(9):
        for f in range(18):
            gf = c * 18 + f
            ks, t = divmod(f, 9)
            if f == 18 - D and c < 8:
                a("s_barrier")
                st()
            lg.wait(gf)
            rd = reads(gf + D) if gf + D < 162 else []
            w = WB + (gf % 9) * 4
            half = (len(rd) + 1) // 2
            for F in range(2):
                cc = "0" if (c == 0 and ks == 0) else v(accr(t, F), 4)
                if variant == "qk":
                    a(f"v_mfma_f32_16x16x32_bf16 {v(accr(t,F),4)}, {v(w,4)}, {v(xreg(c*2+ks,F),4)}, {cc}")
                else:
                    a(f"v_mfma_f32_16x16x32_bf16 {v(accr(t,F),4)}, {v(xreg(c*2+ks,F),4)}, {v(w,4)}, {cc}")
                for t_, tag in (rd[:half] if F == 0 else rd[half:]): lg.issue(t_, tag)
    st()
    return AB, XB

def k1():
    a = Asm()
    st = Stamps(a, 0)
    st(real=True); st()
    prologue(a)
    a("v_and_b32 v1, 63, v0")
    a("v_lshrrev_b32 v13, 6, v0")
    a("v_readfirstlane_b32 s15, v13")
    a("s_cmp_ge_u32 s2, 192")
    a("s_cbranch_scc1 K1_STAGE1")
    a("s_and_b32 s3, s15, 3")
    a("s_and_b32 s12, s2, 7")
    a("s_lshr_b32 s13, s2, 3")
    a("s_lshr_b32 s4, s13, 3")
    a("s_and_b32 s5, s12, 3")
    a("s_lshr_b32 s14, s12, 2")
    a("s_and_b32 s13, s13, 7")
    a("s_lshl_b32 s14, s14, 3")
    a("s_add_u32 s13, s13, s14")
    a("s_lshl_b32 s6, s13, 2")
    a("s_add_u32 s6, s6, s3")
    a("s_mul_i32 s7, s4, 1152")
    a("s_mul_i32 s14, s5, 288")
    a("s_add_u32 s7, s7, s14")
    a("s_cmp_lt_u32 s15, 4")
    a("s_cbranch_scc1 K1_COMP")
    k1_loader(a, st)
    a.label("K1_COMP")
    st.reset(2)
    a("v_and_b32 v14, 15, v1")
    a("v_lshrrev_b32 v15, 4, v1")
    a("v_lshrrev_b32 v16, 1, v14")
    a("v_xor_b32 v16, v16, v15")
    a("v_lshlrev_b32 v16, 4, v16")
    a("v_lshl_add_u32 v16, v14, 7, v16")
    a("s_lshl_b32 s12, s3, 12")
    a(f"s_add_u32 s12, s12, {CW1}")
    a("v_add_u32 v4, s12, v16")
    a("v_xor_b32 v5, 64, v4")
    a(f"v_add_u32 v8, {2*CH1}, v4")
    a(f"v_add_u32 v9, {2*CH1}, v5")
    a("v_lshrrev_b32 v16, 1, v15")
    a("v_lshlrev_b32 v16, 4, v16")
    a("v_and_b32 v17, 1, v15")
    a("v_lshl_add_u32 v16, v17, 2, v16")
    a("v_lshrrev_b32 v17, 2, v14")
    a("v_add_u32 v16, v16, v17")
    a("v_mul_u32_u24 v16, 288, v16")
    a("v_and_b32 v17, 3, v14")
    a("s_waitcnt lgkmcnt(0)")
    srd(a, 48, P_WS, WS_END)
    a("s_cmp_eq_u32 s4, 2")
    a("s_cbranch_scc1 K1_V")
    a("v_lshrrev_b32 v18, 1, v17")
    a("v_mul_u32_u24 v18, 40, v18")
    a("v_and_b32 v19, 1, v17")
    a("v_lshl_add_u32 v18, v19, 4, v18")
    a("v_add_u32 v2, v16, v18")
    a("v_mul_u32_u24 v18, 72, v17")
    a("v_add_u32 v3, v16, v18")
    a(f"v_add_u32 v6, {2*CH1}, v2")
    a(f"v_add_u32 v7, {2*CH1}, v3")
    a("s_cmp_eq_u32 s4, 0")
    a(f"s_movk_i32 s12, {TSKV}")
    a(f"s_cselect_b32 s12, {TSQ}, s12")
    a(f"s_cselect_b32 s13, {WS_Q}, {WS_KV}")
    a("s_lshl_b32 s9, s5, 9")
    a("s_add_u32 s9, s9, s6")
    a("s_mul_i32 s9, s9, s12")
    a("s_add_u32 s13, s13, s9")
    a("s_lshl_b32 s12, s12, 6")
    a("v_and_b32 v16, 7, v14")
    a("v_lshrrev_b32 v17, 3, v14")
    a("v_lshl_add_u32 v16, v17, 4, v16")
    a("v_lshrrev_b32 v17, 1, v15")
    a("v_mul_lo_u32 v17, v17, s12")
    a("v_and_b32 v18, 1, v15")
    a("v_lshl_add_u32 v17, v18, 9, v17")
    a("v_lshl_add_u32 v17, v16, 4, v17")
    a("v_add_u32 v10, s13, v17")
    a("v_lshlrev_b32 v17, 1, v15")
    a("v_mul_lo_u32 v17, v17, s12")
    a("v_lshl_add_u32 v17, v16, 2, v17")
    a("v_add_u32 v11, s13, v17")
    a("s_lshl_b32 s9, s12, 1")
    AB, XB = k1_gemm(a, "qk", st)
    def accr(t, F): return AB + (t * 2 + F) * 4
    a("s_cmp_lg_u32 s4, 0")
    a("s_cbranch_scc1 K1_NOSCALE")
    a(f"s_mov_b32 s10, {hex(f32bits(QSCALE))}")
    a("s_mov_b32 s11, s10")
    for i in range(36):
        a(f"v_pk_mul_f32 {v(AB+2*i,2)}, {v(AB+2*i,2)}, s[10:11]")
    a.label("K1_NOSCALE")
    a("s_mov_b32 s8, 0")
    T = XB
    for P in range(4):
        for F in range(2):
            r = T + (P * 2 + F) * 4
            for h in range(2):
                A = accr(2 * P + h, F)
                a(f"v_cvt_pk_bf16_f32 v{r+2*h}, v{A}, v{A+1}")
                a(f"v_cvt_pk_bf16_f32 v{r+2*h+1}, v{A+2}, v{A+3}")
            a(f"buffer_store_dwordx4 {v(r,4)}, v10, s[48:51], s8 offen offset:{128*F}")
        if P < 3: a("s_add_u32 s8, s8, s9")
    for F in range(2):
        r = T + 32 + 2 * F
        A = accr(8, F)
        a(f"v_cvt_pk_bf16_f32 v{r}, v{A}, v{A+1}")
        a(f"v_cvt_pk_bf16_f32 v{r+1}, v{A+2}, v{A+3}")
        a(f"buffer_store_dword v{r}, v11, s[48:51], 0 offen offset:{1024+32*F}")
        a(f"buffer_store_dword v{r+1}, v11, s[48:51], s12 offen offset:{1024+32*F}")
    st()
    if STAMP: a("s_waitcnt vmcnt(0)")
    st(); st.flush(15, 8)
    a("s_endpgm")
    a.label("K1_V")
    st.reset(2)
    a("v_lshl_add_u32 v2, v17, 3, v16")
    a(f"v_add_u32 v6, {2*CH1}, v2")
    a("s_lshl_b32 s9, s5, 9")
    a("s_add_u32 s9, s9, s6")
    a(f"s_mul_i32 s9, s9, {TSKV}")
    a(f"s_add_u32 s13, s9, {WS_KV + 1152}")
    a("v_and_b32 v16, 7, v1")
    a(f"s_mov_b32 s12, {64*TSKV}")
    a("v_mul_lo_u32 v16, v16, s12")
    a("v_lshrrev_b32 v17, 3, v1")
    a("v_mul_u32_u24 v17, 304, v17")
    a("v_add3_u32 v16, v16, v17, s13")
    for i in range(4): a(f"v_mov_b32 v{20+i}, 0x3f803f80")
    a("s_mov_b32 exec_hi, 0")
    a("buffer_store_dwordx4 v[20:23], v16, s[48:51], 0 offen offset:288")
    a("s_mov_b32 exec_hi, -1")
    a(f"s_mov_b32 s12, {64*TSKV - 288}")
    a("v_mul_u32_u24 v16, 304, v15")
    a("v_lshl_add_u32 v16, v14, 4, v16")
    a("v_add_u32 v16, s13, v16")
    EA = 16 + 16 + 36 + 72
    for t in range(9):
        a(f"v_add_u32 v17, {16*t}, v14")
        a("v_mul_u32_u24 v17, 57, v17")
        a("v_lshrrev_b32 v17, 10, v17")
        a("v_mul_lo_u32 v17, v17, s12")
        a(f"v_add_u32 v{EA+t}, v16, v17")
    AB, XB = k1_gemm(a, "v", st)
    assert AB + 72 == EA
    T = XB
    for t in range(9):
        r = T + t * 4
        for F in range(2):
            A = accr(t, F)
            a(f"v_cvt_pk_bf16_f32 v{r+2*F}, v{A}, v{A+1}")
            a(f"v_cvt_pk_bf16_f32 v{r+2*F+1}, v{A+2}, v{A+3}")
        a(f"buffer_store_dwordx4 {v(r,4)}, v{EA+t}, s[48:51], 0 offen offset:{256*t}")
    st()
    if STAMP: a("s_waitcnt vmcnt(0)")
    st(); st.flush(15, 8)
    a("s_endpgm")
    a.label("K1_STAGE1")
    st.reset(2)
    a("s_cmp_ge_u32 s2, 228")
    a("s_cbranch_scc1 K1_END")
    a("s_sub_u32 s4, s2, 192")
    a("s_lshl_b32 s4, s4, 3")
    a("s_add_u32 s4, s4, s15")
    a("s_mul_i32 s5, s4, 57")
    a("s_lshr_b32 s5, s5, 9")
    for u in range(288): assert (u * 57) >> 9 == u // 9
    a("s_mul_i32 s6, s5, 9")
    a("s_sub_u32 s6, s4, s6")
    a("v_and_b32 v10, 7, v1")
    a("v_lshrrev_b32 v11, 3, v1")
    a("s_lshl_b32 s7, s5, 3")
    a("v_add_u32 v3, s7, v11")
    a("s_lshl_b32 s8, s6, 3")
    a("v_add_u32 v2, s8, v10")
    a("v_mul_u32_u24 v5, 9216, v3")
    a("v_lshl_add_u32 v5, v2, 4, v5")
    a("v_subrev_u32 v4, 4608, v5")
    a("v_add_u32 v6, 4608, v5")
    a("v_lshlrev_b32 v7, 6, v2")
    a("v_xor_b32 v12, v10, v11")
    a("v_lshl_add_u32 v13, v10, 3, v12")
    a("s_lshl_b32 s9, s15, 12")
    a("v_lshl_add_u32 v13, v13, 4, s9")
    a("v_lshl_add_u32 v14, v1, 4, s9")
    a("v_add_u32 v8, s8, v11")
    a("v_lshlrev_b32 v8, 16, v8")
    a("v_add_u32 v9, s7, v12")
    a("v_lshlrev_b32 v9, 4, v9")
    a("v_sub_u32 v8, v8, v9")
    a(f"v_add_u32 v8, {WS_U + 4080}, v8")
    a("s_waitcnt lgkmcnt(0)")
    srd(a, 40, P_BK, 2048 * 1152)
    srd(a, 44, P_BV, 2048 * 1152)
    srd(a, 48, P_SH, 576 * 8)
    srd(a, 52, P_WS, WS_END)
    KB = 16; VB = KB + 48; SB = VB + 36; WF = SB + 16
    for j in range(4):
        a(f"buffer_load_dwordx4 {v(SB+4*j,4)}, v7, s[48:51], 0 offen offset:{16*j}")
    for r in range(12):
        a(f"buffer_load_dwordx4 {v(KB+4*r,4)}, v{4+r//4}, s[40:43], 0 offen offset:{1152*(r%4)}")
    for r in range(9):
        rr = r + 3
        a(f"buffer_load_dwordx4 {v(VB+4*r,4)}, v{4+rr//4}, s[44:47], 0 offen offset:{1152*(rr%4)}")
    a("s_mov_b32 s9, 0xffff0000")
    a("s_waitcnt vmcnt(21)")
    for j in range(8):
        p = j >> 1
        for tap in range(4):
            src = SB + 2 * j + (tap >> 1)
            dst = WF + (p * 4 + tap) * 2 + (j & 1)
            if tap & 1: a(f"v_and_b32 v{dst}, s9, v{src}")
            else: a(f"v_lshlrev_b32 v{dst}, 16, v{src}")
    KF = WF + 32; VF = KF + 24; UF = VF + 18; OB = UF + 18; RB = OB + 16
    st()
    a("s_waitcnt vmcnt(0)")
    st()
    def flush_stores(p):
        a("s_waitcnt lgkmcnt(0)")
        for e in range(2):
            for ver in range(2):
                a(f"s_mov_b32 s10, {(2*p+e)*8192 + ver*4096}")
                a(f"buffer_store_dwordx4 {v(RB+(e*2+ver)*4,4)}, v8, s[52:55], s10 offen")
    for p in range(4):
        for r in range(12):
            a(f"v_lshlrev_b32 v{KF+2*r}, 16, v{KB+4*r+p}")
            a(f"v_and_b32 v{KF+2*r+1}, s9, v{KB+4*r+p}")
        if p > 0: flush_stores(p - 1)
        for r in range(9):
            a(f"v_lshlrev_b32 v{VF+2*r}, 16, v{VB+4*r+p}")
            a(f"v_and_b32 v{VF+2*r+1}, s9, v{VB+4*r+p}")
        W = lambda tap: v(WF + (p * 4 + tap) * 2, 2)
        for r in range(9):
            a(f"v_pk_mul_f32 {v(UF+2*r,2)}, {v(KF+2*r,2)}, {W(3)}")
        for tap in (2, 1, 0):
            for r in range(9):
                a(f"v_pk_fma_f32 {v(UF+2*r,2)}, {v(KF+2*(r+3-tap),2)}, {W(tap)}, {v(UF+2*r,2)}")
        for r in range(9):
            a(f"v_pk_mul_f32 {v(UF+2*r,2)}, {v(UF+2*r,2)}, {v(VF+2*r,2)}")
        for e in range(2):
            for ver in range(2):
                o = OB + (e * 2 + ver) * 4
                for dw in range(4):
                    hi_r = 7 + ver - 2 * dw
                    a(f"v_cvt_pk_bf16_f32 v{o+dw}, v{UF+2*hi_r+e}, v{UF+2*(hi_r-1)+e}")
                a(f"ds_write_b128 v13, {v(o,4)} offset:{(e*2+ver)*1024}")
        for q in range(4):
            a(f"ds_read_b128 {v(RB+q*4,4)}, v14 offset:{q*1024}")
    flush_stores(3)
    st()
    if STAMP: a("s_waitcnt vmcnt(0)")
    st(); st.flush(15, 8)
    a.label("K1_END")
    a("s_endpgm")
    return a


SC2 = 4160; SV2 = 4576; UO2 = 4 * SC2; CHN2 = 4 * SC2 + 2 * SV2
LDS2 = 2 * CHN2
def swap23(x): return (x & ~12) | ((x & 4) << 1) | ((x & 8) >> 1)

def k2_conv(a, st):
    a("s_and_b32 s3, s15, 1")
    a("s_lshr_b32 s13, s15, 1")
    a("s_lshl_b32 s12, s2, 1")
    a("s_add_u32 s12, s12, s13")
    a(f"s_mul_i32 s13, s13, {CHN2}")
    a("v_lshlrev_b32 v2, 4, v1")
    a("v_and_b32 v14, 15, v1")
    a("v_lshrrev_b32 v15, 4, v1")
    a("v_add_u32 v3, v14, v15")
    a("v_subrev_u32 v3, 15, v3")
    a("v_lshlrev_b32 v3, 2, v3")
    a(f"v_mul_u32_u24 v4, {SC2}, v15")
    a("v_lshl_add_u32 v4, v14, 2, v4")
    a("v_add_u32 v4, s13, v4")
    a("v_and_b32 v5, 3, v14")
    a(f"v_mul_u32_u24 v5, {SC2}, v5")
    a("v_lshrrev_b32 v6, 2, v14")
    a("v_add_u32 v6, v6, v15")
    a("v_lshl_add_u32 v5, v6, 4, v5")
    a("s_lshl_b32 s14, s3, 8")
    a("s_add_u32 s14, s14, s13")
    a("v_add_u32 v5, s14, v5")
    a("v_and_b32 v6, 1, v14")
    a(f"v_mul_u32_u24 v6, {SV2}, v6")
    a("v_lshrrev_b32 v7, 1, v14")
    a("v_lshlrev_b32 v7, 6, v7")
    a("v_sub_u32 v6, v6, v7")
    a("v_lshl_add_u32 v6, v15, 4, v6")
    a(f"s_add_u32 s14, s14, {UO2 + 448}")
    a("v_add_u32 v6, s14, v6")
    a(f"s_mul_i32 s14, s3, {SV2}")
    a("s_add_u32 s14, s14, s13")
    a(f"s_add_u32 s14, s14, {UO2}")
    a("v_add_u32 v7, s14, v2")
    for i in range(4): a(f"v_mov_b32 v{16+i}, 0")
    a("s_mov_b32 exec_lo, 0x3fffffff")
    a("s_mov_b32 exec_hi, 0")
    a("ds_write_b128 v7, v[16:19] offset:4096")
    a("s_mov_b64 exec, -1")
    a("s_waitcnt lgkmcnt(0)")
    a("s_lshl_b32 s40, s12, 12")
    a(f"s_sub_u32 s41, {576*4096}, s40")
    a(f"s_add_u32 s4, s{P_SK}, s40")
    a(f"s_addc_u32 s5, s{P_SK+1}, 0")
    a("s_mov_b32 s6, s41")
    a("s_mov_b32 s7, 0x00020000")
    srd(a, 8, P_WS, WS_END)
    a("s_lshl_b32 s41, s2, 2")
    a(f"s_load_dword s42, s[{P_SD}:{P_SD+1}], s41")
    a("s_mov_b32 m0, s14")
    a("s_lshl_b32 s41, s40, 1")
    a("s_lshl_b32 s43, s3, 12")
    a("s_add_u32 s41, s41, s43")
    a(f"s_add_u32 s41, s41, {WS_U}")
    for j in range(4):
        a(f"buffer_load_dwordx4 v2, s[8:11], s41 offen offset:{1024*j} lds")
    a(f"s_mul_i32 s43, s3, {2*SC2}")
    a("s_add_u32 s43, s43, s13")
    a("s_lshl_b32 s44, s3, 3")
    for cc in range(2):
        a(f"s_add_u32 m0, s43, {cc*SC2 + 64}")
        a(f"s_add_u32 s45, s44, {4*cc + 4}")
        for j in range(4):
            a(f"buffer_load_dwordx4 v2, s[4:7], s45 offen offset:{1024*j} lds")
    a("buffer_load_dword v16, v3, s[4:7], 0 offen")
    st()
    a("s_waitcnt vmcnt(0)")
    a("ds_write_b32 v4, v16")
    a("s_waitcnt lgkmcnt(0)")
    st()
    a("s_barrier")
    st()
    HB = 16; UB = HB + 32; AB = UB + 32
    lg = LgTrack(a)
    def rdH(it, c): lg.issue(f"ds_read_b128 {v(HB+4*c,4)}, v5 offset:{512*c + 64*it}", ("H", it, c))
    def rdU(it, d): lg.issue(f"ds_read_b128 {v(UB+4*d,4)}, v6 offset:{3584 - 512*d + 64*it}", ("U", it, d))
    rdH(0, 0)
    for d in range(7, -1, -1): rdU(0, d)
    for c in range(1, 6): rdH(0, c)
    pend = [("H", 0, 6), ("H", 0, 7)]
    for it in range(4):
        for c in range(8):
            js = list(range(7, c - 1, -1))
            for j in js:
                d = j - c
                lg.wait(("H", it, c), ("U", it, d))
                cc = "0" if (it == 0 and c == 0) else v(AB + 4 * j, 4)
                a(f"v_mfma_f32_16x16x32_bf16 {v(AB+4*j,4)}, {v(UB+4*d,4)}, {v(HB+4*c,4)}, {cc}")
                if it < 3:
                    if j == 7: pend.append(("U", it + 1, d))
                    if j == c: pend.append(("H", it + 1, c))
                if pend and len(lg.q) < 14:
                    k, i2, x = pend.pop(0)
                    (rdH if k == "H" else rdU)(i2, x)
        while pend and it < 3 and len(lg.q) < 14:
            k, i2, x = pend.pop(0)
            (rdH if k == "H" else rdU)(i2, x)
    st()
    a("s_barrier")
    a("s_lshl_b32 s14, s3, 12")
    a("s_add_u32 s14, s14, s13")
    a("v_add_u32 v7, s14, v2")
    a("v_xor_b32 v8, 0x1000, v2")
    a("s_xor_b32 s43, s3, 1")
    a("s_lshl_b32 s43, s43, 12")
    a("s_add_u32 s43, s43, s13")
    a("v_add_u32 v8, s43, v2")
    a("v_lshlrev_b32 v9, 7, v15")
    a("v_lshl_add_u32 v9, v14, 2, v9")
    a("s_lshl_b32 s43, s3, 11")
    a(f"s_add_u32 s44, s13, {UO2 + SV2 + 4092 - 1536 - 64}")
    a("s_sub_u32 s44, s44, s43")
    a("v_sub_u32 v10, s44, v9")
    a(f"s_add_u32 s44, s40, s43")
    a(f"s_add_u32 s44, s44, {WS_Y}")
    a("s_cmp_eq_u32 s3, 0")
    a("s_cbranch_scc1 K2C_P0")
    for jj in range(4): a(f"ds_write_b128 v7, {v(AB+4*jj,4)} offset:{1024*jj}")
    for i in range(8): a(f"v_pk_mov_b32 {v(AB+2*i,2)}, {v(AB+16+2*i,2)}, {v(AB+16+2*i,2)} op_sel:[0,1]")
    a("s_branch K2C_J")
    a.label("K2C_P0")
    for jj in range(4): a(f"ds_write_b128 v7, {v(AB+16+4*jj,4)} offset:{1024*jj}")
    a.label("K2C_J")
    for jj in range(4):
        for hi in range(2):
            a(f"ds_read_b32 v{UB+2*jj+hi}, v10 offset:{1536 - 512*jj + 64 - 64*hi}")
    a("s_waitcnt lgkmcnt(0)")
    a("s_barrier")
    for jj in range(4): a(f"ds_read_b128 {v(HB+4*jj,4)}, v8 offset:{1024*jj}")
    a("s_lshr_b32 s45, s15, 1")
    a("s_cmp_eq_u32 s45, 0")
    a("s_cselect_b32 s45, 16, 0")
    a("s_lshl_b32 s42, s42, s45")
    a("s_and_b32 s42, s42, 0xffff0000")
    a("s_mov_b32 s45, 0xffff0000")
    for jj in range(4):
        for hi in range(2):
            u = UB + 2 * jj + hi
            t = UB + 8 + 2 * (2 * jj + hi)
            a(f"v_and_b32 v{t}, s45, v{u}")
            a(f"v_lshlrev_b32 v{t+1}, 16, v{u}")
            a(f"v_fmac_f32 v{AB+4*jj+2*hi}, s42, v{t}")
            a(f"v_fmac_f32 v{AB+4*jj+2*hi+1}, s42, v{t+1}")
    a("s_waitcnt lgkmcnt(0)")
    for jj in range(4):
        for hi in range(2):
            r = AB + 4 * jj + 2 * hi
            a(f"v_pk_add_f32 {v(r,2)}, {v(r,2)}, {v(HB+4*jj+2*hi,2)}")
            a(f"v_cvt_pk_bf16_f32 v{UB+2*jj+hi}, v{r}, v{r+1}")
            a(f"buffer_store_dword v{UB+2*jj+hi}, v9, s[8:11], s44 offen offset:{512*jj + 64*hi}")
    st()
    if STAMP: a("s_waitcnt vmcnt(0)")
    st(); st.flush(15, 4)
    a("s_endpgm")

def k2_attn(a, st):
    MK = 40
    a("s_sub_u32 s3, s2, 288")
    a("s_and_b32 s12, s3, 7")
    a("s_lshr_b32 s13, s3, 3")
    a("s_and_b32 s14, s12, 3")
    a("s_lshl_b32 s14, s14, 3")
    a("s_and_b32 s4, s13, 7")
    a("s_add_u32 s4, s4, s14")
    a("s_lshr_b32 s12, s12, 2")
    a("s_lshl_b32 s12, s12, 3")
    a("s_lshr_b32 s13, s13, 3")
    a("s_sub_u32 s12, s12, s13")
    a("s_add_u32 s12, s12, 7")
    a("s_lshl_b32 s12, s12, 2")
    a("s_add_u32 s3, s12, s15")
    a("s_mov_b32 s14, s4")
    a("s_sub_u32 s12, s12, 8")
    a(f"s_mul_i32 s12, s12, {TSKV}")
    a("s_mul_i32 s13, s15, 7168")
    a("s_add_u32 s12, s12, s13")
    a("v_lshlrev_b32 v2, 4, v1")
    a("v_add_u32 v7, s12, v2")
    a("s_lshl_b32 s12, s14, 6")
    a("s_add_u32 s12, s12, s3")
    a(f"s_mul_i32 s12, s12, {TSQ}")
    a("v_and_b32 v8, 31, v1")
    a("v_lshlrev_b32 v3, 2, v8")
    a("s_waitcnt lgkmcnt(0)")
    a(f"s_mul_i32 s72, s14, {64*TSKV}")
    a(f"s_add_u32 s72, s72, {WS_KV}")
    srd(a, 4, P_WS, 64 * TSKV, "s72")
    srd(a, 8, P_WS, WS_END)
    QM = 12; QT = 16; KA = 20; VA = 36; S = [52, 68, 84]; CBk = 100; O = 116
    a("s_mov_b32 m0, s13")
    for j in range(7):
        a("buffer_load_dwordx4 v7, s[4:7], 0 offen lds")
        if j < 6:
            a("s_add_u32 m0, m0, 1024")
            a("v_add_u32 v7, 1024, v7")
    a(f"buffer_load_dwordx4 {v(QM,4)}, v2, s[8:11], s12 offen")
    a(f"buffer_load_dword v{QT}, v3, s[8:11], s12 offen offset:1024")
    st()
    a(f"s_mul_i32 s13, s15, {TSKV}")
    a("v_add_u32 v2, s13, v2")
    a("v_add_u32 v3, s13, v3")
    a("v_and_b32 v4, 3, v8")
    a("v_and_b32 v5, 4, v8")
    a("v_lshl_or_b32 v4, v5, 1, v4")
    a("v_and_b32 v5, 8, v8")
    a("v_lshrrev_b32 v5, 1, v5")
    a("v_or_b32 v4, v4, v5")
    a("v_min_u32 v5, 18, v8")
    a("v_cmp_gt_u32 vcc, 16, v8")
    a("v_cndmask_b32 v4, v5, v4, vcc")
    a("v_lshrrev_b32 v9, 5, v1")
    a("v_mul_u32_u24 v5, 304, v9")
    a("v_lshl_add_u32 v4, v4, 4, v5")
    a("s_add_u32 s13, s13, 1152")
    a("v_add_u32 v4, s13, v4")
    a("v_lshrrev_b32 v5, 4, v8")
    a("v_lshlrev_b32 v5, 14, v5")
    a("v_lshl_add_u32 v5, v9, 8, v5")
    a("v_and_b32 v6, 15, v8")
    a("v_lshl_add_u32 v5, v6, 4, v5")
    a("s_lshl_b32 s12, s3, 15")
    a("s_lshl_b32 s13, s14, 9")
    a("s_add_u32 s12, s12, s13")
    a(f"s_add_u32 s12, s12, {WS_OM}")
    a("v_lshlrev_b32 v6, 2, v8")
    a("s_lshl_b32 s13, s14, 13")
    a("s_lshl_b32 s73, s3, 7")
    a("s_add_u32 s13, s13, s73")
    a(f"s_add_u32 s13, s13, {WS_OT}")
    for r in range(16):
        m = 0
        for l in range(64):
            j = (r & 7) + 8 * (l >> 5) + 16 * (r >> 3)
            if j <= swap23(l & 31): m |= 1 << l
        a(f"s_mov_b32 s{MK+2*r}, {hex(m & 0xffffffff)}")
        a(f"s_mov_b32 s{MK+2*r+1}, {hex(m >> 32)}")
    for b in range(2):
        for i in (6, 7): a(f"v_mov_b32 v{KA+8*b+i}, 0")
    a(f"v_mov_b32 v{QT+2}, 0")
    a(f"v_mov_b32 v{QT+3}, 0")
    a("v_cmp_gt_u32 vcc, 32, v1")
    a(f"v_mov_b32 v{QT+1}, 0x3f80")
    a(f"v_cndmask_b32 v{QT+1}, 0, v{QT+1}, vcc")
    a("s_waitcnt vmcnt(0)")
    a(f"v_cndmask_b32 v{QT}, 0, v{QT}, vcc")
    st()
    a("s_barrier")
    st()
    lg = LgTrack(a)
    kcount = [0]
    def rdK(t, tag):
        b = kcount[0] & 1; kcount[0] += 1
        lg.issue(f"ds_read_b128 {v(KA+8*b,4)}, v2 offset:{t*TSKV}", tag)
        lg.issue(f"ds_read_b32 v{KA+8*b+4}, v3 offset:{t*TSKV+1024}", tag)
        return b
    def qk(t, b, tag, D, C):
        if t < 8:
            a(f"s_cmp_ge_u32 s3, {8-t}")
            a("s_cselect_b32 s72, 0, 0xf149")
            a(f"v_mov_b32 v{KA+8*b+5}, s72")
        else:
            a(f"v_mov_b32 v{KA+8*b+5}, 0")
        lg.wait(tag)
        a(f"v_mfma_f32_32x32x16_bf16 {v(D,16)}, {v(KA+8*b,4)}, {v(QM,4)}, {C}")
        a(f"v_mfma_f32_32x32x16_bf16 {v(D,16)}, {v(KA+8*b+4,4)}, {v(QT,4)}, {v(D,16)}")
    MX = 10
    def maxes(R, first):
        for i in range(8):
            m = MX + (i & 1)
            if first and i < 2: a(f"v_max_f32 v{m}, v{R+2*i}, v{R+2*i+1}")
            else: a(f"v_max3_f32 v{m}, v{R+2*i}, v{R+2*i+1}, v{m}")
    order = [8, 0, 1, 2, 3, 4, 5, 6, 7]
    bufs = {}
    bufs[0] = rdK(order[0], ("k1", 0)); bufs[1] = rdK(order[1], ("k1", 1))
    dst = lambda n: S[0] if n == 0 else S[1 + ((n - 1) & 1)]
    for n, t in enumerate(order):
        qk(t, bufs[n], ("k1", n), dst(n), "0")
        if n + 2 < 9: bufs[n + 2] = rdK(order[n + 2], ("k1", n + 2))
        if n == 2:
            for r in range(16):
                a(f"v_cndmask_b32 v{S[0]+r}, v{S[1]+r}, v{S[0]+r}, s[{MK+2*r}:{MK+2*r+1}]")
            maxes(S[0], True)
        elif n > 2:
            maxes(dst(n - 1), False)
    b2 = {}
    b2[1] = rdK(1, ("k2", 1)); b2[2] = rdK(2, ("k2", 2))
    def rdV(t, vb, tag):
        for hf in range(2):
            lg.issue(f"ds_read_b128 {v(VA+8*vb+4*hf,4)}, v4 offset:{t*TSKV + 608*hf}", tag)
    rdV(8, 0, ("v", 8)); rdV(0, 1, ("v", 0))
    maxes(dst(8), False)
    a(f"v_max_f32 v{MX}, v{MX}, v{MX+1}")
    a(f"v_mov_b32 v{MX+1}, v{MX}")
    a(f"v_permlane32_swap_b32 v{MX}, v{MX+1}")
    a(f"v_max_f32 v{MX}, v{MX}, v{MX+1}")
    a(f"v_sub_f32 v{CBk}, 0, v{MX}")
    a(f"v_sub_f32 v{CBk+1}, 0, v{MX}")
    for i in range(1, 8): a(f"v_pk_mov_b32 {v(CBk+2*i,2)}, {v(CBk,2)}, {v(CBk,2)} op_sel:[0,1]")
    st()
    qk(1, b2[1], ("k2", 1), S[1], v(CBk, 16))
    b2[3] = rdK(3, ("k2", 3))
    for i in range(8): a(f"v_pk_add_f32 {v(S[0]+2*i,2)}, {v(S[0]+2*i,2)}, {v(CBk,2)}")
    for r in range(16): a(f"v_exp_f32 v{S[0]+r}, v{S[0]+r}")
    for r in range(16): a(f"v_cndmask_b32 v{S[2]+r}, 0, v{S[0]+r}, s[{MK+2*r}:{MK+2*r+1}]")
    for i in range(8): a(f"v_cvt_pk_bf16_f32 v{S[0]+i}, v{S[0]+2*i}, v{S[0]+2*i+1}")
    for i in range(8): a(f"v_cvt_pk_bf16_f32 v{S[2]+i}, v{S[2]+2*i}, v{S[2]+2*i+1}")
    for i in range(8): a(f"v_xor_b32 v{S[0]+i}, v{S[0]+i}, v{S[2]+i}")
    def pv(P, vb, tag, first=False):
        lg.wait(tag)
        for hf in range(2):
            C = "0" if (first and hf == 0) else v(O, 16)
            a(f"v_mfma_f32_32x32x16_bf16 {v(O,16)}, {v(VA+8*vb+4*hf,4)}, {v(P+4*hf,4)}, {C}")
    pv(S[2], 0, ("v", 8), True)
    rdV(1, 0, ("v", 1))
    pv(S[0], 1, ("v", 0))
    rdV(2, 1, ("v", 2))
    for t in range(1, 8):
        cur = S[t & 1]; nxt = S[(t + 1) & 1]
        if t < 7:
            qk(t + 1, b2[t + 1], ("k2", t + 1), nxt, v(CBk, 16))
            if t + 3 < 8: b2[t + 3] = rdK(t + 3, ("k2", t + 3))
        for r in range(16): a(f"v_exp_f32 v{cur+r}, v{cur+r}")
        for i in range(8): a(f"v_cvt_pk_bf16_f32 v{cur+i}, v{cur+2*i}, v{cur+2*i+1}")
        pv(cur, (t - 1) & 1, ("v", t))
        if t + 2 < 8: rdV(t + 2, (t - 1) & 1, ("v", t + 2))
    st()
    a(f"v_rcp_f32 v{MX}, v{O+10}")
    for i in range(5): a(f"v_pk_mul_f32 {v(O+2*i,2)}, {v(O+2*i,2)}, {v(MX,2)} op_sel_hi:[1,0]")
    for i in range(5): a(f"v_cvt_pk_bf16_f32 v{S[0]+i}, v{O+2*i}, v{O+2*i+1}")
    a(f"buffer_store_dwordx4 {v(S[0],4)}, v5, s[8:11], s12 offen")
    a("s_mov_b32 exec_hi, 0")
    a(f"buffer_store_dword v{S[0]+4}, v6, s[8:11], s13 offen")
    st()
    if STAMP: a("s_waitcnt vmcnt(0)")
    st(); st.flush(15, 4)
    a("s_endpgm")

def k2():
    a = Asm()
    st = Stamps(a, 1, base=74, mx=11)
    st(real=True); st()
    prologue(a)
    a("v_and_b32 v1, 63, v0")
    a("v_lshrrev_b32 v13, 6, v0")
    a("v_readfirstlane_b32 s15, v13")
    a("s_cmp_ge_u32 s2, 288")
    a("s_cbranch_scc1 K2_ATTN")
    k2_conv(a, st)
    a.label("K2_ATTN")
    st.reset(2)
    a("s_cmp_ge_u32 s2, 800")
    a("s_cbranch_scc1 K2_END")
    k2_attn(a, st)
    a.label("K2_END")
    a("s_endpgm")
    return a


CH3 = 12288; EP3 = 9 * CH3; RS3 = 208; LDS3 = EP3 + 4 * 16 * RS3

def k3():
    a = Asm()
    st = Stamps(a, 2)
    st(real=True); st()
    prologue(a)
    a("v_and_b32 v1, 63, v0")
    a("v_lshrrev_b32 v13, 6, v0")
    a("v_readfirstlane_b32 s15, v13")
    a("s_cmp_ge_u32 s2, 192")
    a("s_cbranch_scc1 K3_STAGE3")
    a("s_and_b32 s3, s15, 3")
    a("s_and_b32 s12, s2, 7")
    a("s_lshr_b32 s13, s2, 3")
    a("s_and_b32 s14, s13, 3")
    a("s_lshl_b32 s12, s12, 2")
    a("s_add_u32 s12, s12, s14")
    a("s_lshr_b32 s13, s13, 2")
    a("s_mul_i32 s13, s13, 192")
    a("s_cmp_lt_u32 s15, 4")
    a("s_cbranch_scc1 K3_COMP")
    for u in range(192): assert (u * 171) >> 11 == u // 12
    a("s_mul_i32 s8, s3, 18")
    a("s_lshl_b32 s9, s3, 3")
    for j in range(3):
        a(f"v_add_u32 v16, {64*j}, v1")
        a("v_mul_u32_u24 v17, 171, v16")
        a("v_lshrrev_b32 v17, 11, v17")
        a("v_mul_u32_u24 v18, 12, v17")
        a("v_sub_u32 v18, v16, v18")
        a("v_and_b32 v20, 4, v17")
        a("v_lshrrev_b32 v19, 1, v20")
        a("v_xor_b32 v18, v18, v19")
        a("v_and_b32 v19, 3, v17")
        a("v_lshl_or_b32 v19, v20, 1, v19")
        a("v_and_b32 v20, 8, v17")
        a("v_lshrrev_b32 v20, 1, v20")
        a("v_or_b32 v19, v19, v20")
        a("v_lshlrev_b32 v18, 4, v18")
        a("v_add_u32 v18, s13, v18")
        a("v_add_u32 v20, s8, v19")
        a("v_mul_u32_u24 v20, 1152, v20")
        a(f"v_add_u32 v{2+j}, v20, v18")
        a("v_lshrrev_b32 v20, 1, v19")
        a("v_add_u32 v20, s9, v20")
        a("v_mul_u32_u24 v20, 18, v20")
        a("v_and_b32 v19, 1, v19")
        a("v_add3_u32 v20, v20, v19, 16")
        a("v_mul_u32_u24 v20, 1152, v20")
        a(f"v_add_u32 v{5+j}, v20, v18")
        if j:
            a(f"v_subrev_u32 v{2+j}, {1024*j}, v{2+j}")
            a(f"v_subrev_u32 v{5+j}, {1024*j}, v{5+j}")
    a("s_mul_i32 s8, s3, 3072")
    a("s_waitcnt lgkmcnt(0)")
    srd(a, 40, P_WO, 576 * 1152)
    vm = VmTrack(a)
    st()
    def issue(c):
        a(f"s_add_u32 m0, s8, {c*CH3}")
        a(f"s_mov_b32 s9, {c*72*1152 if c < 8 else 0}")
        for j in range(3):
            vm.issue(f"buffer_load_dwordx4 v{(2 if c < 8 else 5)+j}, s[40:43], s9 offen offset:{1024*j} lds", c)
    LA = 3
    for c in range(LA): issue(c)
    for c in range(9):
        vm.wait(c); st(); a("s_barrier")
        if c + LA < 9: issue(c + LA)
    st.flush(15, 8)
    a("s_endpgm")
    a.label("K3_COMP")
    st.reset(2)
    a("v_and_b32 v14, 15, v1")
    a("v_lshrrev_b32 v15, 4, v1")
    a("v_lshlrev_b32 v2, 4, v1")
    a("v_lshlrev_b32 v3, 15, v15")
    a("v_lshl_add_u32 v3, v14, 2, v3")
    a("s_lshl_b32 s4, s12, 2")
    a("s_add_u32 s4, s4, s3")
    a("s_lshl_b32 s5, s4, 14")
    a(f"s_add_u32 s5, s5, {WS_OM}")
    a("s_lshl_b32 s6, s4, 6")
    a(f"s_add_u32 s6, s6, {WS_OT}")
    a("s_waitcnt lgkmcnt(0)")
    srd(a, 40, P_WS, WS_END)
    srd(a, 44, P_OUT, 2048 * 2304)
    OB = 16; WB = OB + 72; AB = WB + 24
    vm = VmTrack(a)
    for ks in range(16):
        vm.issue(f"buffer_load_dwordx4 {v(OB+4*ks,4)}, v2, s[40:43], s5 offen offset:{1024*(ks&3)}", ks)
        if ks & 3 == 3: a("s_add_u32 s5, s5, 4096")
    for z in range(2):
        for e in range(4):
            a(f"s_add_u32 s7, s6, {(16*z+e)*8192}")
            vm.issue(f"buffer_load_dword v{OB+64+4*z+e}, v3, s[40:43], s7 offen", 16 + z)
    a("v_lshrrev_b32 v4, 1, v15")
    a("v_lshlrev_b32 v4, 4, v4")
    a("v_and_b32 v5, 1, v15")
    a("v_lshl_add_u32 v4, v5, 2, v4")
    a("v_lshrrev_b32 v6, 2, v14")
    a("v_add_u32 v4, v4, v6")
    a("v_mul_u32_u24 v4, 192, v4")
    a("v_and_b32 v6, 3, v14")
    a("v_lshl_add_u32 v4, v6, 3, v4")
    a("v_lshl_add_u32 v4, v5, 5, v4")
    a("v_xor_b32 v5, 32, v4")
    a(f"v_add_u32 v6, {5*CH3}, v4")
    a(f"v_add_u32 v7, {5*CH3}, v5")
    a("v_and_b32 v8, 3, v14")
    a("v_and_b32 v9, 4, v14")
    a("v_lshl_or_b32 v8, v9, 1, v8")
    a("v_and_b32 v9, 8, v14")
    a("v_lshrrev_b32 v9, 1, v9")
    a("v_or_b32 v8, v8, v9")
    a(f"v_mul_u32_u24 v8, {RS3}, v8")
    a("v_lshl_add_u32 v8, v15, 3, v8")
    a(f"s_mul_i32 s7, s3, {16*RS3}")
    a(f"s_add_u32 s7, s7, {EP3}")
    a("v_add_u32 v8, s7, v8")
    EA = AB + 24
    a("s_mul_i32 s8, s4, 36864")
    a("s_add_u32 s8, s8, s13")
    for j in range(3):
        a(f"v_add_u32 v9, {64*j}, v1")
        a("v_mul_u32_u24 v10, 171, v9")
        a("v_lshrrev_b32 v10, 11, v10")
        a("v_mul_u32_u24 v11, 12, v10")
        a("v_sub_u32 v11, v9, v11")
        a("v_lshlrev_b32 v11, 4, v11")
        a(f"v_mul_u32_u24 v12, {RS3}, v10")
        a(f"v_add3_u32 v{EA+j}, v12, v11, s7")
        a("v_mul_u32_u24 v12, 2304, v10")
        a(f"v_add_u32 v{EA+3+j}, v12, v11")
    lg = LgTrack(a)
    def reads(gf):
        c, f = divmod(gf, 12)
        ks, t = divmod(f, 6)
        hi = 2 if c >= 5 else 0
        so = (c - 5 if c >= 5 else c) * CH3
        r = WB + (gf % 6) * 4
        return [(f"ds_read_b64_tr_b16 {v(r+2*rr,2)}, v{4+hi+(t&1)} offset:{so + (32*ks+8*rr)*192 + 64*(t>>1)}", gf) for rr in range(2)]
    D = 5
    st()
    a("s_barrier")
    st()
    for gf in range(D):
        for t_, tag in reads(gf): lg.issue(t_, tag)
    for gf in range(108):
        c, f = divmod(gf, 12)
        ks, t = divmod(f, 6)
        if f == 12 - D and c < 8:
            a("s_barrier"); st()
        if t == 0: vm.wait(2 * c + ks)
        lg.wait(gf)
        cc = "0" if gf < 6 else v(AB + 4 * t, 4)
        a(f"v_mfma_f32_16x16x32_bf16 {v(AB+4*t,4)}, {v(WB+(gf%6)*4,4)}, {v(OB+4*(2*c+ks),4)}, {cc}")
        if gf + D < 108:
            for t_, tag in reads(gf + D): lg.issue(t_, tag)
    st()
    for t in range(6):
        a(f"v_cvt_pk_bf16_f32 v{OB+2*t}, v{AB+4*t}, v{AB+4*t+1}")
        a(f"v_cvt_pk_bf16_f32 v{OB+2*t+1}, v{AB+4*t+2}, v{AB+4*t+3}")
        a(f"ds_write_b64 v8, {v(OB+2*t,2)} offset:{32*t}")
    for j in range(3): a(f"ds_read_b128 {v(OB+16+4*j,4)}, v{EA+j}")
    for j in range(3):
        a(f"s_waitcnt lgkmcnt({2-j})")
        a(f"buffer_store_dwordx4 {v(OB+16+4*j,4)}, v{EA+3+j}, s[44:47], s8 offen")
    st()
    if STAMP: a("s_waitcnt vmcnt(0)")
    st(); st.flush(15, 8)
    a("s_endpgm")
    a.label("K3_STAGE3")
    st.reset(2)
    a("s_cmp_ge_u32 s2, 256")
    a("s_cbranch_scc1 K3_END")
    a("s_sub_u32 s4, s2, 192")
    a("s_lshl_b32 s5, s15, 6")
    a("s_add_u32 s5, s5, s4")
    a("s_cmp_ge_u32 s5, 288")
    a("s_cbranch_scc1 K3_END")
    a("s_and_b32 s6, s4, 7")
    a("s_lshr_b32 s7, s5, 3")
    a("s_cmp_ge_u32 s5, 256")
    a("s_cselect_b32 s6, 8, s6")
    a("s_cselect_b32 s7, s4, s7")
    a("v_and_b32 v10, 7, v1")
    a("v_lshrrev_b32 v11, 3, v1")
    a("v_xor_b32 v12, v10, v11")
    a("v_lshlrev_b32 v2, 15, v11")
    a("v_lshl_add_u32 v2, v12, 4, v2")
    a("s_lshl_b32 s8, s6, 18")
    a("s_lshl_b32 s9, s7, 7")
    a("s_add_u32 s8, s8, s9")
    a(f"s_add_u32 s8, s8, {WS_Y}")
    a("s_lshl_b32 s9, s15, 13")
    a("v_lshl_add_u32 v3, v10, 3, v12")
    a("v_lshl_add_u32 v3, v3, 4, s9")
    a("s_lshl_b32 s10, s7, 3")
    a("v_add_u32 v4, s10, v11")
    a("v_mul_u32_u24 v4, 9216, v4")
    a("s_lshl_b32 s10, s6, 7")
    a("v_lshl_add_u32 v5, v10, 4, s10")
    a("v_lshl_add_u32 v6, v4, 1, v5")
    a("v_add_u32 v4, v4, v5")
    a("v_add_u32 v5, 4608, v4")
    a("s_waitcnt lgkmcnt(0)")
    srd(a, 40, P_WS, WS_END)
    srd(a, 44, P_OUT, 2048 * 2304)
    srd(a, 48, P_BQ, 2048 * 1152)
    for jj in range(8):
        a(f"s_add_u32 m0, s9, {1024*jj}")
        a(f"s_add_u32 s10, s8, {4096*jj}")
        a("buffer_load_dwordx4 v2, s[40:43], s10 offen lds")
    QB = 16; YB = QB + 32; YF = YB + 32; QF = YF + 64
    for r in range(8):
        a(f"buffer_load_dwordx4 {v(QB+4*r,4)}, v{4+(r>>2)}, s[48:51], 0 offen offset:{1152*(r&3)}")
    a("s_mov_b32 s11, 0xffff0000")
    st()
    a("s_waitcnt vmcnt(8)")
    for jj in range(8): a(f"ds_read_b128 {v(YB+4*jj,4)}, v3 offset:{1024*jj}")
    for jj in range(8):
        a(f"s_waitcnt lgkmcnt({7-jj})")
        for w in range(4):
            a(f"v_lshlrev_b32 v{YF+(2*w)*8+jj}, 16, v{YB+4*jj+w}")
            a(f"v_and_b32 v{YF+(2*w+1)*8+jj}, s11, v{YB+4*jj+w}")
    st()
    for r in range(8):
        a(f"s_waitcnt vmcnt(7)")
        q = QF + (r & 1) * 8
        for p in range(4):
            a(f"v_lshlrev_b32 v{q+2*p}, 16, v{QB+4*r+p}")
            a(f"v_and_b32 v{q+2*p+1}, s11, v{QB+4*r+p}")
        for p in range(4):
            a(f"v_pk_mul_f32 {v(q+2*p,2)}, {v(q+2*p,2)}, {v(YF+8*r+2*p,2)}")
        for p in range(4):
            a(f"v_cvt_pk_bf16_f32 v{QB+4*r+p}, v{q+2*p}, v{q+2*p+1}")
        a(f"s_movk_i32 s10, {1152 + 2304*r}")
        a(f"buffer_store_dwordx4 {v(QB+4*r,4)}, v6, s[44:47], s10 offen")
    st()
    if STAMP: a("s_waitcnt vmcnt(0)")
    st(); st.flush(15, 8)
    a.label("K3_END")
    a("s_endpgm")
    return a

HEADER = open("concat_heads__sliding_block__ssm_conv_h3__prompt.s.ref").read().split("; Override")[0]

def build(path, kernels, verbose=False):
    head = HEADER; code = '.amdgcn_target "amdgcn-amd-amdhsa--gfx950"\n.text\n'; desc = '.section .rodata,"a"\n'
    for name, a, grid, block, lds in kernels:
        head += f"; @launch kernel={name} grid=({grid},1,1) block=({block},1,1) lds={lds}\n"
        c, d = kernel_text(name, a, verbose)
        code += c; desc += d
    open(path, "w").write(head + code + desc)

if __name__ == "__main__":
    ks = [("k1_kernel", k1(), 228, 512, NB1 * CH1), ("k2_kernel", k2(), 800, 256, LDS2), ("k3_kernel", k3(), 256, 512, LDS3)]
    build("out_st.s" if STAMP else "out.s", ks, verbose="-v" in sys.argv)
```

```python
import sys, math, struct
sys.path.insert(0, "dev")
from asmlib import *

def f32bits(x): return struct.unpack("<I", struct.pack("<f", x))[0]

TSQ = 1152
TSKV = 2368
WS_Q = 0
WS_KV = 0x280000
WS_OM = 0x780000
WS_OT = 0x980000
WS_U = 0xA00000
WS_Y = 0xF00000
WS_END = 0x1200000
QSCALE = math.log2(math.e) / math.sqrt(18.0)

P_X, P_W, P_WO, P_BQ, P_BK, P_BV, P_SH, P_SK, P_SD, P_OUT, P_DBG, P_WS = [16 + 2 * i for i in range(12)]

def prologue(a):
    a("s_load_dwordx16 s[16:31], s[0:1], 0")
    a("s_load_dwordx8 s[32:39], s[0:1], 64")

def srd(a, d, p, nbytes, off=None):
    if off is None:
        a(f"s_mov_b32 s{d}, s{p}")
        a(f"s_mov_b32 s{d+1}, s{p+1}")
    else:
        a(f"s_add_u32 s{d}, s{p}, {off}")
        a(f"s_addc_u32 s{d+1}, s{p+1}, 0")
    a(f"s_mov_b32 s{d+2}, {nbytes}")
    a(f"s_mov_b32 s{d+3}, 0x00020000")

STAMP = "-stamp" in sys.argv or "-dbgst" in sys.argv
DBGST = "-dbgst" in sys.argv
WS_ST = 0x2000000
class Stamps:
    def __init__(self, a, kidx, base=64, mx=16): self.a = a; self.n = 0; self.kidx = kidx; self.base = base; self.mx = mx; self.dbgidx = (2, 3, 4)
    def reset(self, n): self.n = n
    def __call__(self, real=False):
        if not STAMP: return
        assert self.n < self.mx
        self.a(f"{'s_memrealtime' if real else 's_memtime'} s[{self.base+2*self.n}:{self.base+1+2*self.n}]"); self.n += 1
    def flush(self, wave_sgpr, nw):
        if not STAMP: return
        a = self.a
        a("s_memrealtime s[96:97]")
        a("s_mov_b64 exec, -1")
        a("s_waitcnt lgkmcnt(0)")
        if DBGST:
            a(f"s_sub_u32 s4, s{P_DBG}, {512*self.kidx}")
            a(f"s_subb_u32 s5, s{P_DBG+1}, 0")
            a("s_mov_b32 s6, 64")
            a("s_mov_b32 s7, 0x00020000")
            a("v_mov_b32 v0, 0")
            a("s_mov_b64 exec, 1")
            a(f"s_not_b32 s98, s{self.base}")
            a("v_mov_b32 v1, s98")
            a(f"buffer_atomic_umax v1, v0, s[4:7], 0 offen offset:{20*self.kidx}")
            a("v_mov_b32 v2, s96")
            a(f"buffer_atomic_umax v2, v0, s[4:7], 0 offen offset:{20*self.kidx+4}")
            for q, idx in enumerate(self.dbgidx):
                if idx is None or idx >= self.n: continue
                a(f"s_sub_u32 s98, s{self.base+2*idx}, s{self.base+2}")
                a(f"v_mov_b32 v{3+q}, s98")
                a(f"buffer_atomic_umax v{3+q}, v0, s[4:7], 0 offen offset:{20*self.kidx+8+4*q}")
            return
        srd(a, 4, P_WS, 0x10000000)
        a(f"s_mul_i32 s98, s2, {nw}")
        a(f"s_add_u32 s98, s98, s{wave_sgpr}")
        a("s_lshl_b32 s98, s98, 7")
        a(f"s_add_u32 s98, s98, {WS_ST + self.kidx * 0x100000}")
        a("v_mov_b32 v0, 0")
        for i in range(self.n):
            a(f"v_mov_b32 v1, s{self.base+2*i}")
            a(f"buffer_store_dword v1, v0, s[4:7], s98 offen offset:{4*i}")
        a("v_mov_b32 v1, s96")
        a("buffer_store_dword v1, v0, s[4:7], s98 offen offset:64")
        a(f"v_mov_b32 v1, {self.n}")
        a("buffer_store_dword v1, v0, s[4:7], s98 offen offset:68")
        a("s_getreg_b32 s99, hwreg(HW_REG_HW_ID)")
        a("v_mov_b32 v1, s99")
        a("buffer_store_dword v1, v0, s[4:7], s98 offen offset:72")
        a("s_getreg_b32 s99, hwreg(HW_REG_XCC_ID)")
        a("v_mov_b32 v1, s99")
        a("buffer_store_dword v1, v0, s[4:7], s98 offen offset:76")

class VmTrack:
    def __init__(self, a): self.a = a; self.q = []
    def issue(self, text, tag):
        self.a(text); self.q.append(tag)
    def wait(self, tag, extra=""):
        idx = [i for i, t in enumerate(self.q) if t == tag]
        if not idx:
            if extra: self.a(f"s_waitcnt {extra}")
            return
        n = len(self.q) - 1 - idx[-1]
        assert n <= 63, n
        self.a(f"s_waitcnt vmcnt({n}) {extra}")
        self.q = self.q[idx[-1] + 1:]


class LgTrack:
    def __init__(self, a): self.a = a; self.q = []
    def issue(self, text, tag):
        self.a(text); self.q.append(tag)
        assert len(self.q) <= 15, "too many LDS ops in flight"
    def wait(self, *tags):
        idx = [i for i, t in enumerate(self.q) if t in tags]
        if not idx: return
        n = len(self.q) - 1 - idx[-1]
        self.a(f"s_waitcnt lgkmcnt({n})")
        self.q = self.q[idx[-1] + 1:]
    def drain(self):
        if self.q: self.a("s_waitcnt lgkmcnt(0)")
        self.q = []

NB1 = 4
CW1 = 18432
CH1 = CW1 + 16384

def k1_loader(a, st):
    a("s_mul_i32 s8, s3, 4608")
    a("s_lshl_b32 s12, s3, 12")
    a(f"s_add_u32 s12, s12, {CW1}")
    a("s_mov_b32 s10, -1")
    a("s_mov_b32 s11, 0")
    a("s_lshl_b32 s14, s3, 4")
    for j in range(5):
        r = 4 + j
        a(f"v_add_u32 v16, {64*j}, v1")
        a("v_mul_u32_u24 v17, 57, v16")
        a("v_lshrrev_b32 v17, 10, v17")
        a("v_mul_u32_u24 v18, 18, v17")
        a("v_sub_u32 v18, v16, v18")
        a("v_and_b32 v19, 3, v17")
        a("v_and_b32 v20, 4, v17")
        a("v_lshl_or_b32 v19, v20, 1, v19")
        a("v_and_b32 v20, 8, v17")
        a("v_lshrrev_b32 v20, 1, v20")
        a("v_or_b32 v19, v19, v20")
        a("v_add_u32 v19, s14, v19")
        a("v_mul_u32_u24 v19, 3456, v19")
        a("v_lshl_add_u32 v19, v18, 4, v19")
        a(f"v_add_u32 v{r}, s7, v19")
        if 0 < j < 4: a(f"v_subrev_u32 v{r}, {1024*j}, v{r}")
    for u in range(288): assert (u * 57) >> 10 == u // 18, u
    a("v_lshrrev_b32 v16, 3, v1")
    a("v_lshrrev_b32 v17, 2, v16")
    a("v_lshlrev_b32 v17, 3, v17")
    a("v_and_b32 v18, 3, v16")
    a("v_add_u32 v17, v17, v18")
    a("s_lshl_b32 s14, s6, 5")
    a("v_add_u32 v17, s14, v17")
    a("v_mul_u32_u24 v17, 1152, v17")
    a("v_lshrrev_b32 v18, 4, v1")
    a("v_xor_b32 v18, v18, v1")
    a("v_and_b32 v18, 7, v18")
    a("v_xor_b32 v19, 4, v18")
    a("v_lshl_add_u32 v18, v18, 4, v17")
    a("v_lshl_add_u32 v19, v19, 4, v17")
    for j in range(4):
        srow = 16 * (j & 1) + 4 * (j >> 1)
        a(f"v_add_u32 v{9+j}, {srow*1152 - 1024*j}, v{18 + (j&1)}")
    a("s_waitcnt lgkmcnt(0)")
    srd(a, 40, P_X, 2048 * 1152)
    srd(a, 44, P_W, 576 * 3456)
    vm = VmTrack(a)
    def issue(c):
        slot = c % NB1
        a(f"s_add_u32 m0, s8, {slot*CH1}")
        a(f"s_mov_b32 s9, {c*64*3456}")
        for j in range(4):
            vm.issue(f"buffer_load_dwordx4 v{4+j}, s[44:47], s9 offen offset:{j*1024} lds", c)
        a(f"s_add_u32 m0, s8, {slot*CH1+4096}")
        a("s_mov_b64 exec, s[10:11]")
        vm.issue(f"buffer_load_dwordx4 v8, s[44:47], s9 offen lds", c)
        a("s_mov_b64 exec, -1")
        a(f"s_add_u32 m0, s12, {slot*CH1}")
        a(f"s_movk_i32 s9, {c*128}")
        for j in range(4):
            vm.issue(f"buffer_load_dwordx4 v{9+j}, s[40:43], s9 offen offset:{j*1024} lds", c)
    st()
    issue(0); issue(1)
    st()
    for c in range(9):
        vm.wait(c); st(); a("s_barrier")
        if c + 2 < 9: issue(c + 2)
    st(); st.flush(15, 8)
    a("s_endpgm")

def k1_gemm(a, variant, st):
    XB = 16
    WB = XB + 16
    AB = WB + 36
    lg = LgTrack(a)
    def xreg(gk, F): return XB + ((gk & 1) * 2 + F) * 4
    def accr(t, F): return AB + (t * 2 + F) * 4
    def reads(gf):
        c, f = divmod(gf, 18)
        ks, t = divmod(f, 9)
        slot = c % NB1
        hi = 4 if slot >= 2 else 0
        so = (slot & 1) * CH1
        out = []
        if t == 0:
            for F in range(2):
                out.append((f"ds_read_b128 {v(xreg(c*2+ks,F),4)}, v{4+ks+hi} offset:{so + 2048*F}", gf))
        if variant == "qk":
            if t < 8: base, co = 2 + hi, 72 * (t >> 1) + 8 * (t & 1)
            else: base, co = 3 + hi, 32
        else:
            base, co = 2 + hi, 32 * t
        r = WB + (gf % 9) * 4
        for rr in range(2):
            out.append((f"ds_read_b64_tr_b16 {v(r+2*rr,2)}, v{base} offset:{so + (32*ks+8*rr)*288 + co}", gf))
        return out
    D = 6
    st()
    a("s_barrier")
    st()
    for gf in range(D):
        for t_, tag in reads(gf): lg.issue(t_, tag)
    for c in range(9):
        for f in range(18):
            gf = c * 18 + f
            ks, t = divmod(f, 9)
            if f == 18 - D and c < 8:
                a("s_barrier")
                st()
            lg.wait(gf)
            rd = reads(gf + D) if gf + D < 162 else []
            w = WB + (gf % 9) * 4
            half = (len(rd) + 1) // 2
            for F in range(2):
                cc = "0" if (c == 0 and ks == 0) else v(accr(t, F), 4)
                if variant == "qk":
                    a(f"v_mfma_f32_16x16x32_bf16 {v(accr(t,F),4)}, {v(w,4)}, {v(xreg(c*2+ks,F),4)}, {cc}")
                else:
                    a(f"v_mfma_f32_16x16x32_bf16 {v(accr(t,F),4)}, {v(xreg(c*2+ks,F),4)}, {v(w,4)}, {cc}")
                for t_, tag in (rd[:half] if F == 0 else rd[half:]): lg.issue(t_, tag)
    st()
    return AB, XB

def k1():
    a = Asm()
    st = Stamps(a, 0)
    st(real=True); st()
    prologue(a)
    a("v_and_b32 v1, 63, v0")
    a("v_lshrrev_b32 v13, 6, v0")
    a("v_readfirstlane_b32 s15, v13")
    a("s_cmp_ge_u32 s2, 192")
    a("s_cbranch_scc1 K1_STAGE1")
    a("s_and_b32 s3, s15, 3")
    a("s_and_b32 s12, s2, 7")
    a("s_lshr_b32 s13, s2, 3")
    a("s_lshr_b32 s4, s13, 3")
    a("s_and_b32 s5, s12, 3")
    a("s_lshr_b32 s14, s12, 2")
    a("s_and_b32 s13, s13, 7")
    a("s_lshl_b32 s14, s14, 3")
    a("s_add_u32 s13, s13, s14")
    a("s_lshl_b32 s6, s13, 2")
    a("s_add_u32 s6, s6, s3")
    a("s_mul_i32 s7, s4, 1152")
    a("s_mul_i32 s14, s5, 288")
    a("s_add_u32 s7, s7, s14")
    a("s_cmp_lt_u32 s15, 4")
    a("s_cbranch_scc1 K1_COMP")
    k1_loader(a, st)
    a.label("K1_COMP")
    st.reset(2)
    a("v_and_b32 v14, 15, v1")
    a("v_lshrrev_b32 v15, 4, v1")
    a("v_lshrrev_b32 v16, 1, v14")
    a("v_xor_b32 v16, v16, v15")
    a("v_lshlrev_b32 v16, 4, v16")
    a("v_lshl_add_u32 v16, v14, 7, v16")
    a("s_lshl_b32 s12, s3, 12")
    a(f"s_add_u32 s12, s12, {CW1}")
    a("v_add_u32 v4, s12, v16")
    a("v_xor_b32 v5, 64, v4")
    a(f"v_add_u32 v8, {2*CH1}, v4")
    a(f"v_add_u32 v9, {2*CH1}, v5")
    a("v_lshrrev_b32 v16, 1, v15")
    a("v_lshlrev_b32 v16, 4, v16")
    a("v_and_b32 v17, 1, v15")
    a("v_lshl_add_u32 v16, v17, 2, v16")
    a("v_lshrrev_b32 v17, 2, v14")
    a("v_add_u32 v16, v16, v17")
    a("v_mul_u32_u24 v16, 288, v16")
    a("v_and_b32 v17, 3, v14")
    a("s_waitcnt lgkmcnt(0)")
    srd(a, 48, P_WS, WS_END)
    a("s_cmp_eq_u32 s4, 2")
    a("s_cbranch_scc1 K1_V")
    a("v_lshrrev_b32 v18, 1, v17")
    a("v_mul_u32_u24 v18, 40, v18")
    a("v_and_b32 v19, 1, v17")
    a("v_lshl_add_u32 v18, v19, 4, v18")
    a("v_add_u32 v2, v16, v18")
    a("v_mul_u32_u24 v18, 72, v17")
    a("v_add_u32 v3, v16, v18")
    a(f"v_add_u32 v6, {2*CH1}, v2")
    a(f"v_add_u32 v7, {2*CH1}, v3")
    a("s_cmp_eq_u32 s4, 0")
    a(f"s_movk_i32 s12, {TSKV}")
    a(f"s_cselect_b32 s12, {TSQ}, s12")
    a(f"s_cselect_b32 s13, {WS_Q}, {WS_KV}")
    a("s_lshl_b32 s9, s5, 9")
    a("s_add_u32 s9, s9, s6")
    a("s_mul_i32 s9, s9, s12")
    a("s_add_u32 s13, s13, s9")
    a("s_lshl_b32 s12, s12, 6")
    a("v_and_b32 v16, 7, v14")
    a("v_lshrrev_b32 v17, 3, v14")
    a("v_lshl_add_u32 v16, v17, 4, v16")
    a("v_lshrrev_b32 v17, 1, v15")
    a("v_mul_lo_u32 v17, v17, s12")
    a("v_and_b32 v18, 1, v15")
    a("v_lshl_add_u32 v17, v18, 9, v17")
    a("v_lshl_add_u32 v17, v16, 4, v17")
    a("v_add_u32 v10, s13, v17")
    a("v_lshlrev_b32 v17, 1, v15")
    a("v_mul_lo_u32 v17, v17, s12")
    a("v_lshl_add_u32 v17, v16, 2, v17")
    a("v_add_u32 v11, s13, v17")
    a("s_lshl_b32 s9, s12, 1")
    AB, XB = k1_gemm(a, "qk", st)
    def accr(t, F): return AB + (t * 2 + F) * 4
    a("s_cmp_lg_u32 s4, 0")
    a("s_cbranch_scc1 K1_NOSCALE")
    a(f"s_mov_b32 s10, {hex(f32bits(QSCALE))}")
    a("s_mov_b32 s11, s10")
    for i in range(36):
        a(f"v_pk_mul_f32 {v(AB+2*i,2)}, {v(AB+2*i,2)}, s[10:11]")
    a.label("K1_NOSCALE")
    a("s_mov_b32 s8, 0")
    T = XB
    for P in range(4):
        for F in range(2):
            r = T + (P * 2 + F) * 4
            for h in range(2):
                A = accr(2 * P + h, F)
                a(f"v_cvt_pk_bf16_f32 v{r+2*h}, v{A}, v{A+1}")
                a(f"v_cvt_pk_bf16_f32 v{r+2*h+1}, v{A+2}, v{A+3}")
            a(f"buffer_store_dwordx4 {v(r,4)}, v10, s[48:51], s8 offen offset:{128*F}")
        if P < 3: a("s_add_u32 s8, s8, s9")
    for F in range(2):
        r = T + 32 + 2 * F
        A = accr(8, F)
        a(f"v_cvt_pk_bf16_f32 v{r}, v{A}, v{A+1}")
        a(f"v_cvt_pk_bf16_f32 v{r+1}, v{A+2}, v{A+3}")
        a(f"buffer_store_dword v{r}, v11, s[48:51], 0 offen offset:{1024+32*F}")
        a(f"buffer_store_dword v{r+1}, v11, s[48:51], s12 offen offset:{1024+32*F}")
    st()
    if STAMP: a("s_waitcnt vmcnt(0)")
    st(); st.flush(15, 8)
    a("s_endpgm")
    a.label("K1_V")
    st.reset(2)
    a("v_lshl_add_u32 v2, v17, 3, v16")
    a(f"v_add_u32 v6, {2*CH1}, v2")
    a("s_lshl_b32 s9, s5, 9")
    a("s_add_u32 s9, s9, s6")
    a(f"s_mul_i32 s9, s9, {TSKV}")
    a(f"s_add_u32 s13, s9, {WS_KV + 1152}")
    a("v_and_b32 v16, 7, v1")
    a(f"s_mov_b32 s12, {64*TSKV}")
    a("v_mul_lo_u32 v16, v16, s12")
    a("v_lshrrev_b32 v17, 3, v1")
    a("v_mul_u32_u24 v17, 304, v17")
    a("v_add3_u32 v16, v16, v17, s13")
    for i in range(4): a(f"v_mov_b32 v{20+i}, 0x3f803f80")
    a("s_mov_b32 exec_hi, 0")
    a("buffer_store_dwordx4 v[20:23], v16, s[48:51], 0 offen offset:288")
    a("s_mov_b32 exec_hi, -1")
    a(f"s_mov_b32 s12, {64*TSKV - 288}")
    a("v_mul_u32_u24 v16, 304, v15")
    a("v_lshl_add_u32 v16, v14, 4, v16")
    a("v_add_u32 v16, s13, v16")
    EA = 16 + 16 + 36 + 72
    for t in range(9):
        a(f"v_add_u32 v17, {16*t}, v14")
        a("v_mul_u32_u24 v17, 57, v17")
        a("v_lshrrev_b32 v17, 10, v17")
        a("v_mul_lo_u32 v17, v17, s12")
        a(f"v_add_u32 v{EA+t}, v16, v17")
    AB, XB = k1_gemm(a, "v", st)
    assert AB + 72 == EA
    T = XB
    for t in range(9):
        r = T + t * 4
        for F in range(2):
            A = accr(t, F)
            a(f"v_cvt_pk_bf16_f32 v{r+2*F}, v{A}, v{A+1}")
            a(f"v_cvt_pk_bf16_f32 v{r+2*F+1}, v{A+2}, v{A+3}")
        a(f"buffer_store_dwordx4 {v(r,4)}, v{EA+t}, s[48:51], 0 offen offset:{256*t}")
    st()
    if STAMP: a("s_waitcnt vmcnt(0)")
    st(); st.flush(15, 8)
    a("s_endpgm")
    a.label("K1_STAGE1")
    st.reset(2)
    a("s_cmp_ge_u32 s2, 228")
    a("s_cbranch_scc1 K1_END")
    a("s_sub_u32 s4, s2, 192")
    a("s_lshl_b32 s4, s4, 3")
    a("s_add_u32 s4, s4, s15")
    a("s_mul_i32 s5, s4, 57")
    a("s_lshr_b32 s5, s5, 9")
    for u in range(288): assert (u * 57) >> 9 == u // 9
    a("s_mul_i32 s6, s5, 9")
    a("s_sub_u32 s6, s4, s6")
    a("v_and_b32 v10, 7, v1")
    a("v_lshrrev_b32 v11, 3, v1")
    a("s_lshl_b32 s7, s5, 3")
    a("v_add_u32 v3, s7, v11")
    a("s_lshl_b32 s8, s6, 3")
    a("v_add_u32 v2, s8, v10")
    a("v_mul_u32_u24 v5, 9216, v3")
    a("v_lshl_add_u32 v5, v2, 4, v5")
    a("v_subrev_u32 v4, 4608, v5")
    a("v_add_u32 v6, 4608, v5")
    a("v_lshlrev_b32 v7, 6, v2")
    a("v_xor_b32 v12, v10, v11")
    a("v_lshl_add_u32 v13, v10, 3, v12")
    a("s_lshl_b32 s9, s15, 12")
    a("v_lshl_add_u32 v13, v13, 4, s9")
    a("v_lshl_add_u32 v14, v1, 4, s9")
    a("v_add_u32 v8, s8, v11")
    a("v_lshlrev_b32 v8, 16, v8")
    a("v_add_u32 v9, s7, v12")
    a("v_lshlrev_b32 v9, 4, v9")
    a("v_sub_u32 v8, v8, v9")
    a(f"v_add_u32 v8, {WS_U + 4080}, v8")
    a("s_waitcnt lgkmcnt(0)")
    srd(a, 40, P_BK, 2048 * 1152)
    srd(a, 44, P_BV, 2048 * 1152)
    srd(a, 48, P_SH, 576 * 8)
    srd(a, 52, P_WS, WS_END)
    KB = 16; VB = KB + 48; SB = VB + 36; WF = SB + 16
    for j in range(4):
        a(f"buffer_load_dwordx4 {v(SB+4*j,4)}, v7, s[48:51], 0 offen offset:{16*j}")
    for r in range(12):
        a(f"buffer_load_dwordx4 {v(KB+4*r,4)}, v{4+r//4}, s[40:43], 0 offen offset:{1152*(r%4)}")
    for r in range(9):
        rr = r + 3
        a(f"buffer_load_dwordx4 {v(VB+4*r,4)}, v{4+rr//4}, s[44:47], 0 offen offset:{1152*(rr%4)}")
    a("s_mov_b32 s9, 0xffff0000")
    a("s_waitcnt vmcnt(21)")
    for j in range(8):
        p = j >> 1
        for tap in range(4):
            src = SB + 2 * j + (tap >> 1)
            dst = WF + (p * 4 + tap) * 2 + (j & 1)
            if tap & 1: a(f"v_and_b32 v{dst}, s9, v{src}")
            else: a(f"v_lshlrev_b32 v{dst}, 16, v{src}")
    KF = WF + 32; VF = KF + 24; UF = VF + 18; OB = UF + 18; RB = OB + 16
    st()
    a("s_waitcnt vmcnt(0)")
    st()
    def flush_stores(p):
        a("s_waitcnt lgkmcnt(0)")
        for e in range(2):
            for ver in range(2):
                a(f"s_mov_b32 s10, {(2*p+e)*8192 + ver*4096}")
                a(f"buffer_store_dwordx4 {v(RB+(e*2+ver)*4,4)}, v8, s[52:55], s10 offen")
    for p in range(4):
        for r in range(12):
            a(f"v_lshlrev_b32 v{KF+2*r}, 16, v{KB+4*r+p}")
            a(f"v_and_b32 v{KF+2*r+1}, s9, v{KB+4*r+p}")
        if p > 0: flush_stores(p - 1)
        for r in range(9):
            a(f"v_lshlrev_b32 v{VF+2*r}, 16, v{VB+4*r+p}")
            a(f"v_and_b32 v{VF+2*r+1}, s9, v{VB+4*r+p}")
        W = lambda tap: v(WF + (p * 4 + tap) * 2, 2)
        for r in range(9):
            a(f"v_pk_mul_f32 {v(UF+2*r,2)}, {v(KF+2*r,2)}, {W(3)}")
        for tap in (2, 1, 0):
            for r in range(9):
                a(f"v_pk_fma_f32 {v(UF+2*r,2)}, {v(KF+2*(r+3-tap),2)}, {W(tap)}, {v(UF+2*r,2)}")
        for r in range(9):
            a(f"v_pk_mul_f32 {v(UF+2*r,2)}, {v(UF+2*r,2)}, {v(VF+2*r,2)}")
        for e in range(2):
            for ver in range(2):
                o = OB + (e * 2 + ver) * 4
                for dw in range(4):
                    hi_r = 7 + ver - 2 * dw
                    a(f"v_cvt_pk_bf16_f32 v{o+dw}, v{UF+2*hi_r+e}, v{UF+2*(hi_r-1)+e}")
                a(f"ds_write_b128 v13, {v(o,4)} offset:{(e*2+ver)*1024}")
        for q in range(4):
            a(f"ds_read_b128 {v(RB+q*4,4)}, v14 offset:{q*1024}")
    flush_stores(3)
    st()
    if STAMP: a("s_waitcnt vmcnt(0)")
    st(); st.flush(15, 8)
    a.label("K1_END")
    a("s_endpgm")
    return a


SC2 = 4160; SV2 = 4576; UO2 = 4 * SC2; CHN2 = 4 * SC2 + 2 * SV2
LDS2 = 2 * CHN2
def swap23(x): return (x & ~12) | ((x & 4) << 1) | ((x & 8) >> 1)

def k2_conv(a, st):
    a("s_and_b32 s3, s15, 1")
    a("s_lshr_b32 s13, s15, 1")
    a("s_lshl_b32 s12, s2, 1")
    a("s_add_u32 s12, s12, s13")
    a(f"s_mul_i32 s13, s13, {CHN2}")
    a("v_lshlrev_b32 v2, 4, v1")
    a("v_and_b32 v14, 15, v1")
    a("v_lshrrev_b32 v15, 4, v1")
    a("v_add_u32 v3, v14, v15")
    a("v_subrev_u32 v3, 15, v3")
    a("v_lshlrev_b32 v3, 2, v3")
    a(f"v_mul_u32_u24 v4, {SC2}, v15")
    a("v_lshl_add_u32 v4, v14, 2, v4")
    a("v_add_u32 v4, s13, v4")
    a("v_and_b32 v5, 3, v14")
    a(f"v_mul_u32_u24 v5, {SC2}, v5")
    a("v_lshrrev_b32 v6, 2, v14")
    a("v_add_u32 v6, v6, v15")
    a("v_lshl_add_u32 v5, v6, 4, v5")
    a("s_lshl_b32 s14, s3, 8")
    a("s_add_u32 s14, s14, s13")
    a("v_add_u32 v5, s14, v5")
    a("v_and_b32 v6, 1, v14")
    a(f"v_mul_u32_u24 v6, {SV2}, v6")
    a("v_lshrrev_b32 v7, 1, v14")
    a("v_lshlrev_b32 v7, 6, v7")
    a("v_sub_u32 v6, v6, v7")
    a("v_lshl_add_u32 v6, v15, 4, v6")
    a(f"s_add_u32 s14, s14, {UO2 + 448}")
    a("v_add_u32 v6, s14, v6")
    a(f"s_mul_i32 s14, s3, {SV2}")
    a("s_add_u32 s14, s14, s13")
    a(f"s_add_u32 s14, s14, {UO2}")
    a("v_add_u32 v7, s14, v2")
    for i in range(4): a(f"v_mov_b32 v{16+i}, 0")
    a("s_mov_b32 exec_lo, 0x3fffffff")
    a("s_mov_b32 exec_hi, 0")
    a("ds_write_b128 v7, v[16:19] offset:4096")
    a("s_mov_b64 exec, -1")
    a("s_waitcnt lgkmcnt(0)")
    a("s_lshl_b32 s40, s12, 12")
    a(f"s_sub_u32 s41, {576*4096}, s40")
    a(f"s_add_u32 s4, s{P_SK}, s40")
    a(f"s_addc_u32 s5, s{P_SK+1}, 0")
    a("s_mov_b32 s6, s41")
    a("s_mov_b32 s7, 0x00020000")
    srd(a, 8, P_WS, WS_END)
    a("s_lshl_b32 s41, s2, 2")
    a(f"s_load_dword s42, s[{P_SD}:{P_SD+1}], s41")
    a("s_mov_b32 m0, s14")
    a("s_lshl_b32 s41, s40, 1")
    a("s_lshl_b32 s43, s3, 12")
    a("s_add_u32 s41, s41, s43")
    a(f"s_add_u32 s41, s41, {WS_U}")
    for j in range(4):
        a(f"buffer_load_dwordx4 v2, s[8:11], s41 offen offset:{1024*j} lds")
    a(f"s_mul_i32 s43, s3, {2*SC2}")
    a("s_add_u32 s43, s43, s13")
    a("s_lshl_b32 s44, s3, 3")
    for cc in range(2):
        a(f"s_add_u32 m0, s43, {cc*SC2 + 64}")
        a(f"s_add_u32 s45, s44, {4*cc + 4}")
        for j in range(4):
            a(f"buffer_load_dwordx4 v2, s[4:7], s45 offen offset:{1024*j} lds")
    a("buffer_load_dword v16, v3, s[4:7], 0 offen")
    st()
    a("s_waitcnt vmcnt(0)")
    a("ds_write_b32 v4, v16")
    a("s_waitcnt lgkmcnt(0)")
    st()
    a("s_barrier")
    st()
    HB = 16; UB = HB + 32; AB = UB + 32
    lg = LgTrack(a)
    def rdH(it, c): lg.issue(f"ds_read_b128 {v(HB+4*c,4)}, v5 offset:{512*c + 64*it}", ("H", it, c))
    def rdU(it, d): lg.issue(f"ds_read_b128 {v(UB+4*d,4)}, v6 offset:{3584 - 512*d + 64*it}", ("U", it, d))
    rdH(0, 0)
    for d in range(7, -1, -1): rdU(0, d)
    for c in range(1, 6): rdH(0, c)
    pend = [("H", 0, 6), ("H", 0, 7)]
    for it in range(4):
        for c in range(8):
            js = list(range(7, c - 1, -1))
            for j in js:
                d = j - c
                lg.wait(("H", it, c), ("U", it, d))
                cc = "0" if (it == 0 and c == 0) else v(AB + 4 * j, 4)
                a(f"v_mfma_f32_16x16x32_bf16 {v(AB+4*j,4)}, {v(UB+4*d,4)}, {v(HB+4*c,4)}, {cc}")
                if it < 3:
                    if j == 7: pend.append(("U", it + 1, d))
                    if j == c: pend.append(("H", it + 1, c))
                if pend and len(lg.q) < 14:
                    k, i2, x = pend.pop(0)
                    (rdH if k == "H" else rdU)(i2, x)
        while pend and it < 3 and len(lg.q) < 14:
            k, i2, x = pend.pop(0)
            (rdH if k == "H" else rdU)(i2, x)
    st()
    a("s_barrier")
    a("s_lshl_b32 s14, s3, 12")
    a("s_add_u32 s14, s14, s13")
    a("v_add_u32 v7, s14, v2")
    a("v_xor_b32 v8, 0x1000, v2")
    a("s_xor_b32 s43, s3, 1")
    a("s_lshl_b32 s43, s43, 12")
    a("s_add_u32 s43, s43, s13")
    a("v_add_u32 v8, s43, v2")
    a("v_lshlrev_b32 v9, 7, v15")
    a("v_lshl_add_u32 v9, v14, 2, v9")
    a("s_lshl_b32 s43, s3, 11")
    a(f"s_add_u32 s44, s13, {UO2 + SV2 + 4092 - 1536 - 64}")
    a("s_sub_u32 s44, s44, s43")
    a("v_sub_u32 v10, s44, v9")
    a(f"s_add_u32 s44, s40, s43")
    a(f"s_add_u32 s44, s44, {WS_Y}")
    a("s_cmp_eq_u32 s3, 0")
    a("s_cbranch_scc1 K2C_P0")
    for jj in range(4): a(f"ds_write_b128 v7, {v(AB+4*jj,4)} offset:{1024*jj}")
    for i in range(8): a(f"v_pk_mov_b32 {v(AB+2*i,2)}, {v(AB+16+2*i,2)}, {v(AB+16+2*i,2)} op_sel:[0,1]")
    a("s_branch K2C_J")
    a.label("K2C_P0")
    for jj in range(4): a(f"ds_write_b128 v7, {v(AB+16+4*jj,4)} offset:{1024*jj}")
    a.label("K2C_J")
    for jj in range(4):
        for hi in range(2):
            a(f"ds_read_b32 v{UB+2*jj+hi}, v10 offset:{1536 - 512*jj + 64 - 64*hi}")
    a("s_waitcnt lgkmcnt(0)")
    a("s_barrier")
    for jj in range(4): a(f"ds_read_b128 {v(HB+4*jj,4)}, v8 offset:{1024*jj}")
    a("s_lshr_b32 s45, s15, 1")
    a("s_cmp_eq_u32 s45, 0")
    a("s_cselect_b32 s45, 16, 0")
    a("s_lshl_b32 s42, s42, s45")
    a("s_and_b32 s42, s42, 0xffff0000")
    a("s_mov_b32 s45, 0xffff0000")
    for jj in range(4):
        for hi in range(2):
            u = UB + 2 * jj + hi
            t = UB + 8 + 2 * (2 * jj + hi)
            a(f"v_and_b32 v{t}, s45, v{u}")
            a(f"v_lshlrev_b32 v{t+1}, 16, v{u}")
            a(f"v_fmac_f32 v{AB+4*jj+2*hi}, s42, v{t}")
            a(f"v_fmac_f32 v{AB+4*jj+2*hi+1}, s42, v{t+1}")
    a("s_waitcnt lgkmcnt(0)")
    for jj in range(4):
        for hi in range(2):
            r = AB + 4 * jj + 2 * hi
            a(f"v_pk_add_f32 {v(r,2)}, {v(r,2)}, {v(HB+4*jj+2*hi,2)}")
            a(f"v_cvt_pk_bf16_f32 v{UB+2*jj+hi}, v{r}, v{r+1}")
            a(f"buffer_store_dword v{UB+2*jj+hi}, v9, s[8:11], s44 offen offset:{512*jj + 64*hi}")
    st()
    if STAMP: a("s_waitcnt vmcnt(0)")
    st(); st.flush(15, 4)
    a("s_endpgm")

def k2_attn(a, st):
    MK = 40
    a("s_sub_u32 s3, s2, 288")
    a("s_and_b32 s12, s3, 7")
    a("s_lshr_b32 s13, s3, 3")
    a("s_and_b32 s14, s12, 3")
    a("s_lshl_b32 s14, s14, 3")
    a("s_and_b32 s4, s13, 7")
    a("s_add_u32 s4, s4, s14")
    a("s_lshr_b32 s12, s12, 2")
    a("s_lshl_b32 s12, s12, 3")
    a("s_lshr_b32 s13, s13, 3")
    a("s_sub_u32 s12, s12, s13")
    a("s_add_u32 s12, s12, 7")
    a("s_lshl_b32 s12, s12, 2")
    a("s_add_u32 s3, s12, s15")
    a("s_mov_b32 s14, s4")
    a("s_sub_u32 s12, s12, 8")
    a(f"s_mul_i32 s12, s12, {TSKV}")
    a("s_mul_i32 s13, s15, 7168")
    a("s_add_u32 s12, s12, s13")
    a("v_lshlrev_b32 v2, 4, v1")
    a("v_add_u32 v7, s12, v2")
    a("s_lshl_b32 s12, s14, 6")
    a("s_add_u32 s12, s12, s3")
    a(f"s_mul_i32 s12, s12, {TSQ}")
    a("v_and_b32 v8, 31, v1")
    a("v_lshlrev_b32 v3, 2, v8")
    a("s_waitcnt lgkmcnt(0)")
    a(f"s_mul_i32 s72, s14, {64*TSKV}")
    a(f"s_add_u32 s72, s72, {WS_KV}")
    srd(a, 4, P_WS, 64 * TSKV, "s72")
    srd(a, 8, P_WS, WS_END)
    QM = 12; QT = 16; KA = 20; VA = 36; S = [52, 68, 84]; CBk = 100; O = 116
    a("s_mov_b32 m0, s13")
    for j in range(7):
        a("buffer_load_dwordx4 v7, s[4:7], 0 offen lds")
        if j < 6:
            a("s_add_u32 m0, m0, 1024")
            a("v_add_u32 v7, 1024, v7")
    a(f"buffer_load_dwordx4 {v(QM,4)}, v2, s[8:11], s12 offen")
    a(f"buffer_load_dword v{QT}, v3, s[8:11], s12 offen offset:1024")
    st()
    a(f"s_mul_i32 s13, s15, {TSKV}")
    a("v_add_u32 v2, s13, v2")
    a("v_add_u32 v3, s13, v3")
    a("v_and_b32 v4, 3, v8")
    a("v_and_b32 v5, 4, v8")
    a("v_lshl_or_b32 v4, v5, 1, v4")
    a("v_and_b32 v5, 8, v8")
    a("v_lshrrev_b32 v5, 1, v5")
    a("v_or_b32 v4, v4, v5")
    a("v_min_u32 v5, 18, v8")
    a("v_cmp_gt_u32 vcc, 16, v8")
    a("v_cndmask_b32 v4, v5, v4, vcc")
    a("v_lshrrev_b32 v9, 5, v1")
    a("v_mul_u32_u24 v5, 304, v9")
    a("v_lshl_add_u32 v4, v4, 4, v5")
    a("s_add_u32 s13, s13, 1152")
    a("v_add_u32 v4, s13, v4")
    a("v_lshrrev_b32 v5, 4, v8")
    a("v_lshlrev_b32 v5, 14, v5")
    a("v_lshl_add_u32 v5, v9, 8, v5")
    a("v_and_b32 v6, 15, v8")
    a("v_lshl_add_u32 v5, v6, 4, v5")
    a("s_lshl_b32 s12, s3, 15")
    a("s_lshl_b32 s13, s14, 9")
    a("s_add_u32 s12, s12, s13")
    a(f"s_add_u32 s12, s12, {WS_OM}")
    a("v_lshlrev_b32 v6, 2, v8")
    a("s_lshl_b32 s13, s14, 13")
    a("s_lshl_b32 s73, s3, 7")
    a("s_add_u32 s13, s13, s73")
    a(f"s_add_u32 s13, s13, {WS_OT}")
    for r in range(16):
        m = 0
        for l in range(64):
            j = (r & 7) + 8 * (l >> 5) + 16 * (r >> 3)
            if j <= swap23(l & 31): m |= 1 << l
        a(f"s_mov_b32 s{MK+2*r}, {hex(m & 0xffffffff)}")
        a(f"s_mov_b32 s{MK+2*r+1}, {hex(m >> 32)}")
    for b in range(2):
        for i in (6, 7): a(f"v_mov_b32 v{KA+8*b+i}, 0")
    a(f"v_mov_b32 v{QT+2}, 0")
    a(f"v_mov_b32 v{QT+3}, 0")
    a("v_cmp_gt_u32 vcc, 32, v1")
    a(f"v_mov_b32 v{QT+1}, 0x3f80")
    a(f"v_cndmask_b32 v{QT+1}, 0, v{QT+1}, vcc")
    a("s_waitcnt vmcnt(0)")
    a(f"v_cndmask_b32 v{QT}, 0, v{QT}, vcc")
    st()
    a("s_barrier")
    st()
    lg = LgTrack(a)
    kcount = [0]
    def rdK(t, tag):
        b = kcount[0] & 1; kcount[0] += 1
        lg.issue(f"ds_read_b128 {v(KA+8*b,4)}, v2 offset:{t*TSKV}", tag)
        lg.issue(f"ds_read_b32 v{KA+8*b+4}, v3 offset:{t*TSKV+1024}", tag)
        return b
    def qk(t, b, tag, D, C):
        if t < 8:
            a(f"s_cmp_ge_u32 s3, {8-t}")
            a("s_cselect_b32 s72, 0, 0xf149")
            a(f"v_mov_b32 v{KA+8*b+5}, s72")
        else:
            a(f"v_mov_b32 v{KA+8*b+5}, 0")
        lg.wait(tag)
        a(f"v_mfma_f32_32x32x16_bf16 {v(D,16)}, {v(KA+8*b,4)}, {v(QM,4)}, {C}")
        a(f"v_mfma_f32_32x32x16_bf16 {v(D,16)}, {v(KA+8*b+4,4)}, {v(QT,4)}, {v(D,16)}")
    MX = 10
    def maxes(R, first):
        for i in range(8):
            m = MX + (i & 1)
            if first and i < 2: a(f"v_max_f32 v{m}, v{R+2*i}, v{R+2*i+1}")
            else: a(f"v_max3_f32 v{m}, v{R+2*i}, v{R+2*i+1}, v{m}")
    order = [8, 0, 1, 2, 3, 4, 5, 6, 7]
    bufs = {}
    bufs[0] = rdK(order[0], ("k1", 0)); bufs[1] = rdK(order[1], ("k1", 1))
    dst = lambda n: S[0] if n == 0 else S[1 + ((n - 1) & 1)]
    for n, t in enumerate(order):
        qk(t, bufs[n], ("k1", n), dst(n), "0")
        if n + 2 < 9: bufs[n + 2] = rdK(order[n + 2], ("k1", n + 2))
        if n == 2:
            for r in range(16):
                a(f"v_cndmask_b32 v{S[0]+r}, v{S[1]+r}, v{S[0]+r}, s[{MK+2*r}:{MK+2*r+1}]")
            maxes(S[0], True)
        elif n > 2:
            maxes(dst(n - 1), False)
    b2 = {}
    b2[1] = rdK(1, ("k2", 1)); b2[2] = rdK(2, ("k2", 2))
    def rdV(t, vb, tag):
        for hf in range(2):
            lg.issue(f"ds_read_b128 {v(VA+8*vb+4*hf,4)}, v4 offset:{t*TSKV + 608*hf}", tag)
    rdV(8, 0, ("v", 8)); rdV(0, 1, ("v", 0))
    maxes(dst(8), False)
    a(f"v_max_f32 v{MX}, v{MX}, v{MX+1}")
    a(f"v_mov_b32 v{MX+1}, v{MX}")
    a(f"v_permlane32_swap_b32 v{MX}, v{MX+1}")
    a(f"v_max_f32 v{MX}, v{MX}, v{MX+1}")
    a(f"v_sub_f32 v{CBk}, 0, v{MX}")
    a(f"v_sub_f32 v{CBk+1}, 0, v{MX}")
    for i in range(1, 8): a(f"v_pk_mov_b32 {v(CBk+2*i,2)}, {v(CBk,2)}, {v(CBk,2)} op_sel:[0,1]")
    st()
    qk(1, b2[1], ("k2", 1), S[1], v(CBk, 16))
    b2[3] = rdK(3, ("k2", 3))
    for i in range(8): a(f"v_pk_add_f32 {v(S[0]+2*i,2)}, {v(S[0]+2*i,2)}, {v(CBk,2)}")
    for r in range(16): a(f"v_exp_f32 v{S[0]+r}, v{S[0]+r}")
    for r in range(16): a(f"v_cndmask_b32 v{S[2]+r}, 0, v{S[0]+r}, s[{MK+2*r}:{MK+2*r+1}]")
    for i in range(8): a(f"v_cvt_pk_bf16_f32 v{S[0]+i}, v{S[0]+2*i}, v{S[0]+2*i+1}")
    for i in range(8): a(f"v_cvt_pk_bf16_f32 v{S[2]+i}, v{S[2]+2*i}, v{S[2]+2*i+1}")
    for i in range(8): a(f"v_xor_b32 v{S[0]+i}, v{S[0]+i}, v{S[2]+i}")
    def pv(P, vb, tag, first=False):
        lg.wait(tag)
        for hf in range(2):
            C = "0" if (first and hf == 0) else v(O, 16)
            a(f"v_mfma_f32_32x32x16_bf16 {v(O,16)}, {v(VA+8*vb+4*hf,4)}, {v(P+4*hf,4)}, {C}")
    pv(S[2], 0, ("v", 8), True)
    rdV(1, 0, ("v", 1))
    pv(S[0], 1, ("v", 0))
    rdV(2, 1, ("v", 2))
    for t in range(1, 8):
        cur = S[t & 1]; nxt = S[(t + 1) & 1]
        if t < 7:
            qk(t + 1, b2[t + 1], ("k2", t + 1), nxt, v(CBk, 16))
            if t + 3 < 8: b2[t + 3] = rdK(t + 3, ("k2", t + 3))
        for r in range(16): a(f"v_exp_f32 v{cur+r}, v{cur+r}")
        for i in range(8): a(f"v_cvt_pk_bf16_f32 v{cur+i}, v{cur+2*i}, v{cur+2*i+1}")
        pv(cur, (t - 1) & 1, ("v", t))
        if t + 2 < 8: rdV(t + 2, (t - 1) & 1, ("v", t + 2))
    st()
    a(f"v_rcp_f32 v{MX}, v{O+10}")
    for i in range(5): a(f"v_pk_mul_f32 {v(O+2*i,2)}, {v(O+2*i,2)}, {v(MX,2)} op_sel_hi:[1,0]")
    for i in range(5): a(f"v_cvt_pk_bf16_f32 v{S[0]+i}, v{O+2*i}, v{O+2*i+1}")
    a(f"buffer_store_dwordx4 {v(S[0],4)}, v5, s[8:11], s12 offen")
    a("s_mov_b32 exec_hi, 0")
    a(f"buffer_store_dword v{S[0]+4}, v6, s[8:11], s13 offen")
    st()
    if STAMP: a("s_waitcnt vmcnt(0)")
    st(); st.flush(15, 4)
    a("s_endpgm")

def k2():
    a = Asm()
    st = Stamps(a, 1, base=74, mx=11)
    st(real=True); st()
    prologue(a)
    a("v_and_b32 v1, 63, v0")
    a("v_lshrrev_b32 v13, 6, v0")
    a("v_readfirstlane_b32 s15, v13")
    a("s_cmp_ge_u32 s2, 288")
    a("s_cbranch_scc1 K2_ATTN")
    k2_conv(a, st)
    a.label("K2_ATTN")
    st.reset(2)
    a("s_cmp_ge_u32 s2, 800")
    a("s_cbranch_scc1 K2_END")
    k2_attn(a, st)
    a.label("K2_END")
    a("s_endpgm")
    return a


CH3 = 12288; EP3 = 9 * CH3; RS3 = 208; LDS3 = EP3 + 4 * 16 * RS3

def k3():
    a = Asm()
    st = Stamps(a, 2)
    st(real=True); st()
    prologue(a)
    a("v_and_b32 v1, 63, v0")
    a("v_lshrrev_b32 v13, 6, v0")
    a("v_readfirstlane_b32 s15, v13")
    a("s_cmp_ge_u32 s2, 192")
    a("s_cbranch_scc1 K3_STAGE3")
    a("s_and_b32 s3, s15, 3")
    a("s_and_b32 s12, s2, 7")
    a("s_lshr_b32 s13, s2, 3")
    a("s_and_b32 s14, s13, 3")
    a("s_lshl_b32 s12, s12, 2")
    a("s_add_u32 s12, s12, s14")
    a("s_lshr_b32 s13, s13, 2")
    a("s_mul_i32 s13, s13, 192")
    a("s_cmp_lt_u32 s15, 4")
    a("s_cbranch_scc1 K3_COMP")
    for u in range(192): assert (u * 171) >> 11 == u // 12
    a("s_mul_i32 s8, s3, 18")
    a("s_lshl_b32 s9, s3, 3")
    for j in range(3):
        a(f"v_add_u32 v16, {64*j}, v1")
        a("v_mul_u32_u24 v17, 171, v16")
        a("v_lshrrev_b32 v17, 11, v17")
        a("v_mul_u32_u24 v18, 12, v17")
        a("v_sub_u32 v18, v16, v18")
        a("v_and_b32 v20, 4, v17")
        a("v_lshrrev_b32 v19, 1, v20")
        a("v_xor_b32 v18, v18, v19")
        a("v_and_b32 v19, 3, v17")
        a("v_lshl_or_b32 v19, v20, 1, v19")
        a("v_and_b32 v20, 8, v17")
        a("v_lshrrev_b32 v20, 1, v20")
        a("v_or_b32 v19, v19, v20")
        a("v_lshlrev_b32 v18, 4, v18")
        a("v_add_u32 v18, s13, v18")
        a("v_add_u32 v20, s8, v19")
        a("v_mul_u32_u24 v20, 1152, v20")
        a(f"v_add_u32 v{2+j}, v20, v18")
        a("v_lshrrev_b32 v20, 1, v19")
        a("v_add_u32 v20, s9, v20")
        a("v_mul_u32_u24 v20, 18, v20")
        a("v_and_b32 v19, 1, v19")
        a("v_add3_u32 v20, v20, v19, 16")
        a("v_mul_u32_u24 v20, 1152, v20")
        a(f"v_add_u32 v{5+j}, v20, v18")
        if j:
            a(f"v_subrev_u32 v{2+j}, {1024*j}, v{2+j}")
            a(f"v_subrev_u32 v{5+j}, {1024*j}, v{5+j}")
    a("s_mul_i32 s8, s3, 3072")
    a("s_waitcnt lgkmcnt(0)")
    srd(a, 40, P_WO, 576 * 1152)
    vm = VmTrack(a)
    st()
    def issue(c):
        a(f"s_add_u32 m0, s8, {c*CH3}")
        a(f"s_mov_b32 s9, {c*72*1152 if c < 8 else 0}")
        for j in range(3):
            vm.issue(f"buffer_load_dwordx4 v{(2 if c < 8 else 5)+j}, s[40:43], s9 offen offset:{1024*j} lds", c)
    LA = 3
    for c in range(LA): issue(c)
    for c in range(9):
        vm.wait(c); st(); a("s_barrier")
        if c + LA < 9: issue(c + LA)
    st.flush(15, 8)
    a("s_endpgm")
    a.label("K3_COMP")
    st.reset(2)
    a("v_and_b32 v14, 15, v1")
    a("v_lshrrev_b32 v15, 4, v1")
    a("v_lshlrev_b32 v2, 4, v1")
    a("v_lshlrev_b32 v3, 15, v15")
    a("v_lshl_add_u32 v3, v14, 2, v3")
    a("s_lshl_b32 s4, s12, 2")
    a("s_add_u32 s4, s4, s3")
    a("s_lshl_b32 s5, s4, 14")
    a(f"s_add_u32 s5, s5, {WS_OM}")
    a("s_lshl_b32 s6, s4, 6")
    a(f"s_add_u32 s6, s6, {WS_OT}")
    a("s_waitcnt lgkmcnt(0)")
    srd(a, 40, P_WS, WS_END)
    srd(a, 44, P_OUT, 2048 * 2304)
    OB = 16; WB = OB + 72; AB = WB + 24
    vm = VmTrack(a)
    for ks in range(16):
        vm.issue(f"buffer_load_dwordx4 {v(OB+4*ks,4)}, v2, s[40:43], s5 offen offset:{1024*(ks&3)}", ks)
        if ks & 3 == 3: a("s_add_u32 s5, s5, 4096")
    for z in range(2):
        for e in range(4):
            a(f"s_add_u32 s7, s6, {(16*z+e)*8192}")
            vm.issue(f"buffer_load_dword v{OB+64+4*z+e}, v3, s[40:43], s7 offen", 16 + z)
    a("v_lshrrev_b32 v4, 1, v15")
    a("v_lshlrev_b32 v4, 4, v4")
    a("v_and_b32 v5, 1, v15")
    a("v_lshl_add_u32 v4, v5, 2, v4")
    a("v_lshrrev_b32 v6, 2, v14")
    a("v_add_u32 v4, v4, v6")
    a("v_mul_u32_u24 v4, 192, v4")
    a("v_and_b32 v6, 3, v14")
    a("v_lshl_add_u32 v4, v6, 3, v4")
    a("v_lshl_add_u32 v4, v5, 5, v4")
    a("v_xor_b32 v5, 32, v4")
    a(f"v_add_u32 v6, {5*CH3}, v4")
    a(f"v_add_u32 v7, {5*CH3}, v5")
    a("v_and_b32 v8, 3, v14")
    a("v_and_b32 v9, 4, v14")
    a("v_lshl_or_b32 v8, v9, 1, v8")
    a("v_and_b32 v9, 8, v14")
    a("v_lshrrev_b32 v9, 1, v9")
    a("v_or_b32 v8, v8, v9")
    a(f"v_mul_u32_u24 v8, {RS3}, v8")
    a("v_lshl_add_u32 v8, v15, 3, v8")
    a(f"s_mul_i32 s7, s3, {16*RS3}")
    a(f"s_add_u32 s7, s7, {EP3}")
    a("v_add_u32 v8, s7, v8")
    EA = AB + 24
    a("s_mul_i32 s8, s4, 36864")
    a("s_add_u32 s8, s8, s13")
    for j in range(3):
        a(f"v_add_u32 v9, {64*j}, v1")
        a("v_mul_u32_u24 v10, 171, v9")
        a("v_lshrrev_b32 v10, 11, v10")
        a("v_mul_u32_u24 v11, 12, v10")
        a("v_sub_u32 v11, v9, v11")
        a("v_lshlrev_b32 v11, 4, v11")
        a(f"v_mul_u32_u24 v12, {RS3}, v10")
        a(f"v_add3_u32 v{EA+j}, v12, v11, s7")
        a("v_mul_u32_u24 v12, 2304, v10")
        a(f"v_add_u32 v{EA+3+j}, v12, v11")
    lg = LgTrack(a)
    def reads(gf):
        c, f = divmod(gf, 12)
        ks, t = divmod(f, 6)
        hi = 2 if c >= 5 else 0
        so = (c - 5 if c >= 5 else c) * CH3
        r = WB + (gf % 6) * 4
        return [(f"ds_read_b64_tr_b16 {v(r+2*rr,2)}, v{4+hi+(t&1)} offset:{so + (32*ks+8*rr)*192 + 64*(t>>1)}", gf) for rr in range(2)]
    D = 5
    st()
    a("s_barrier")
    st()
    for gf in range(D):
        for t_, tag in reads(gf): lg.issue(t_, tag)
    for gf in range(108):
        c, f = divmod(gf, 12)
        ks, t = divmod(f, 6)
        if f == 12 - D and c < 8:
            a("s_barrier"); st()
        if t == 0: vm.wait(2 * c + ks)
        lg.wait(gf)
        cc = "0" if gf < 6 else v(AB + 4 * t, 4)
        a(f"v_mfma_f32_16x16x32_bf16 {v(AB+4*t,4)}, {v(WB+(gf%6)*4,4)}, {v(OB+4*(2*c+ks),4)}, {cc}")
        if gf + D < 108:
            for t_, tag in reads(gf + D): lg.issue(t_, tag)
    st()
    for t in range(6):
        a(f"v_cvt_pk_bf16_f32 v{OB+2*t}, v{AB+4*t}, v{AB+4*t+1}")
        a(f"v_cvt_pk_bf16_f32 v{OB+2*t+1}, v{AB+4*t+2}, v{AB+4*t+3}")
        a(f"ds_write_b64 v8, {v(OB+2*t,2)} offset:{32*t}")
    for j in range(3): a(f"ds_read_b128 {v(OB+16+4*j,4)}, v{EA+j}")
    for j in range(3):
        a(f"s_waitcnt lgkmcnt({2-j})")
        a(f"buffer_store_dwordx4 {v(OB+16+4*j,4)}, v{EA+3+j}, s[44:47], s8 offen")
    st()
    if STAMP: a("s_waitcnt vmcnt(0)")
    st(); st.flush(15, 8)
    a("s_endpgm")
    a.label("K3_STAGE3")
    st.reset(2)
    a("s_cmp_ge_u32 s2, 256")
    a("s_cbranch_scc1 K3_END")
    a("s_sub_u32 s4, s2, 192")
    a("s_lshl_b32 s5, s15, 6")
    a("s_add_u32 s5, s5, s4")
    a("s_cmp_ge_u32 s5, 288")
    a("s_cbranch_scc1 K3_END")
    a("s_and_b32 s6, s4, 7")
    a("s_lshr_b32 s7, s5, 3")
    a("s_cmp_ge_u32 s5, 256")
    a("s_cselect_b32 s6, 8, s6")
    a("s_cselect_b32 s7, s4, s7")
    a("v_and_b32 v10, 7, v1")
    a("v_lshrrev_b32 v11, 3, v1")
    a("v_xor_b32 v12, v10, v11")
    a("v_lshlrev_b32 v2, 15, v11")
    a("v_lshl_add_u32 v2, v12, 4, v2")
    a("s_lshl_b32 s8, s6, 18")
    a("s_lshl_b32 s9, s7, 7")
    a("s_add_u32 s8, s8, s9")
    a(f"s_add_u32 s8, s8, {WS_Y}")
    a("s_lshl_b32 s9, s15, 13")
    a("v_lshl_add_u32 v3, v10, 3, v12")
    a("v_lshl_add_u32 v3, v3, 4, s9")
    a("s_lshl_b32 s10, s7, 3")
    a("v_add_u32 v4, s10, v11")
    a("v_mul_u32_u24 v4, 9216, v4")
    a("s_lshl_b32 s10, s6, 7")
    a("v_lshl_add_u32 v5, v10, 4, s10")
    a("v_lshl_add_u32 v6, v4, 1, v5")
    a("v_add_u32 v4, v4, v5")
    a("v_add_u32 v5, 4608, v4")
    a("s_waitcnt lgkmcnt(0)")
    srd(a, 40, P_WS, WS_END)
    srd(a, 44, P_OUT, 2048 * 2304)
    srd(a, 48, P_BQ, 2048 * 1152)
    for jj in range(8):
        a(f"s_add_u32 m0, s9, {1024*jj}")
        a(f"s_add_u32 s10, s8, {4096*jj}")
        a("buffer_load_dwordx4 v2, s[40:43], s10 offen lds")
    QB = 16; YB = QB + 32; YF = YB + 32; QF = YF + 64
    for r in range(8):
        a(f"buffer_load_dwordx4 {v(QB+4*r,4)}, v{4+(r>>2)}, s[48:51], 0 offen offset:{1152*(r&3)}")
    a("s_mov_b32 s11, 0xffff0000")
    st()
    a("s_waitcnt vmcnt(8)")
    for jj in range(8): a(f"ds_read_b128 {v(YB+4*jj,4)}, v3 offset:{1024*jj}")
    for jj in range(8):
        a(f"s_waitcnt lgkmcnt({7-jj})")
        for w in range(4):
            a(f"v_lshlrev_b32 v{YF+(2*w)*8+jj}, 16, v{YB+4*jj+w}")
            a(f"v_and_b32 v{YF+(2*w+1)*8+jj}, s11, v{YB+4*jj+w}")
    st()
    for r in range(8):
        a(f"s_waitcnt vmcnt(7)")
        q = QF + (r & 1) * 8
        for p in range(4):
            a(f"v_lshlrev_b32 v{q+2*p}, 16, v{QB+4*r+p}")
            a(f"v_and_b32 v{q+2*p+1}, s11, v{QB+4*r+p}")
        for p in range(4):
            a(f"v_pk_mul_f32 {v(q+2*p,2)}, {v(q+2*p,2)}, {v(YF+8*r+2*p,2)}")
        for p in range(4):
            a(f"v_cvt_pk_bf16_f32 v{QB+4*r+p}, v{q+2*p}, v{q+2*p+1}")
        a(f"s_movk_i32 s10, {1152 + 2304*r}")
        a(f"buffer_store_dwordx4 {v(QB+4*r,4)}, v6, s[44:47], s10 offen")
    st()
    if STAMP: a("s_waitcnt vmcnt(0)")
    st(); st.flush(15, 8)
    a.label("K3_END")
    a("s_endpgm")
    return a

HEADER = open("concat_heads__sliding_block__ssm_conv_h3__prompt.s.ref").read().split("; Override")[0]

def build(path, kernels, verbose=False):
    head = HEADER; code = '.amdgcn_target "amdgcn-amd-amdhsa--gfx950"\n.text\n'; desc = '.section .rodata,"a"\n'
    for name, a, grid, block, lds in kernels:
        head += f"; @launch kernel={name} grid=({grid},1,1) block=({block},1,1) lds={lds}\n"
        c, d = kernel_text(name, a, verbose)
        code += c; desc += d
    open(path, "w").write(head + code + desc)

if __name__ == "__main__":
    ks = [("k1_kernel", k1(), 228, 512, NB1 * CH1), ("k2_kernel", k2(), 800, 256, LDS2), ("k3_kernel", k3(), 256, 512, LDS3)]
    build("out_dbg.s" if DBGST else "out_st.s" if STAMP else "out.s", ks, verbose="-v" in sys.argv)
```

```python
import sys, math, struct
sys.path.insert(0, "dev")
from asmlib import *

def f32bits(x): return struct.unpack("<I", struct.pack("<f", x))[0]

TSQ = 1152
TSKV = 2368
WS_Q = 0
WS_KV = 0x280000
WS_OM = 0x780000
WS_OT = 0x980000
WS_U = 0xA00000
WS_Y = 0xF00000
WS_END = 0x1200000
QSCALE = math.log2(math.e) / math.sqrt(18.0)

P_X, P_W, P_WO, P_BQ, P_BK, P_BV, P_SH, P_SK, P_SD, P_OUT, P_DBG, P_WS = [16 + 2 * i for i in range(12)]

def prologue(a):
    a("s_load_dwordx16 s[16:31], s[0:1], 0")
    a("s_load_dwordx8 s[32:39], s[0:1], 64")

def srd(a, d, p, nbytes, off=None):
    if off is None:
        a(f"s_mov_b32 s{d}, s{p}")
        a(f"s_mov_b32 s{d+1}, s{p+1}")
    else:
        a(f"s_add_u32 s{d}, s{p}, {off}")
        a(f"s_addc_u32 s{d+1}, s{p+1}, 0")
    a(f"s_mov_b32 s{d+2}, {nbytes}")
    a(f"s_mov_b32 s{d+3}, 0x00020000")

STAMP = "-stamp" in sys.argv or "-dbgst" in sys.argv
DBGST = "-dbgst" in sys.argv
WS_ST = 0x2000000
class Stamps:
    def __init__(self, a, kidx, base=64, mx=16): self.a = a; self.n = 0; self.kidx = kidx; self.base = base; self.mx = mx; self.dbgidx = (2, 3, 4)
    def reset(self, n): self.n = n
    def __call__(self, real=False):
        if not STAMP: return
        assert self.n < self.mx
        self.a(f"{'s_memrealtime' if real else 's_memtime'} s[{self.base+2*self.n}:{self.base+1+2*self.n}]"); self.n += 1
    def flush(self, wave_sgpr, nw):
        if not STAMP: return
        a = self.a
        a("s_memrealtime s[96:97]")
        a("s_mov_b64 exec, -1")
        a("s_waitcnt lgkmcnt(0)")
        srd(a, 4, P_WS, 0x10000000)
        a(f"s_mul_i32 s98, s2, {nw}")
        a(f"s_add_u32 s98, s98, s{wave_sgpr}")
        a("s_lshl_b32 s98, s98, 7")
        a(f"s_add_u32 s98, s98, {WS_ST + self.kidx * 0x100000}")
        a("v_mov_b32 v0, 0")
        for i in range(self.n):
            a(f"v_mov_b32 v1, s{self.base+2*i}")
            a(f"buffer_store_dword v1, v0, s[4:7], s98 offen offset:{4*i}")
        a("v_mov_b32 v1, s96")
        a("buffer_store_dword v1, v0, s[4:7], s98 offen offset:64")
        a(f"v_mov_b32 v1, {self.n}")
        a("buffer_store_dword v1, v0, s[4:7], s98 offen offset:68")
        a("s_getreg_b32 s99, hwreg(HW_REG_HW_ID)")
        a("v_mov_b32 v1, s99")
        a("buffer_store_dword v1, v0, s[4:7], s98 offen offset:72")
        a("s_getreg_b32 s99, hwreg(HW_REG_XCC_ID)")
        a("v_mov_b32 v1, s99")
        a("buffer_store_dword v1, v0, s[4:7], s98 offen offset:76")

class VmTrack:
    def __init__(self, a): self.a = a; self.q = []
    def issue(self, text, tag):
        self.a(text); self.q.append(tag)
    def wait(self, tag, extra=""):
        idx = [i for i, t in enumerate(self.q) if t == tag]
        if not idx:
            if extra: self.a(f"s_waitcnt {extra}")
            return
        n = len(self.q) - 1 - idx[-1]
        assert n <= 63, n
        self.a(f"s_waitcnt vmcnt({n}) {extra}")
        self.q = self.q[idx[-1] + 1:]


class LgTrack:
    def __init__(self, a): self.a = a; self.q = []
    def issue(self, text, tag):
        self.a(text); self.q.append(tag)
        assert len(self.q) <= 15, "too many LDS ops in flight"
    def wait(self, *tags):
        idx = [i for i, t in enumerate(self.q) if t in tags]
        if not idx: return
        n = len(self.q) - 1 - idx[-1]
        self.a(f"s_waitcnt lgkmcnt({n})")
        self.q = self.q[idx[-1] + 1:]
    def drain(self):
        if self.q: self.a("s_waitcnt lgkmcnt(0)")
        self.q = []

NB1 = 4
CW1 = 18432
CH1 = CW1 + 16384

def k1_loader(a, st):
    a("s_mul_i32 s8, s3, 4608")
    a("s_lshl_b32 s12, s3, 12")
    a(f"s_add_u32 s12, s12, {CW1}")
    a("s_mov_b32 s10, -1")
    a("s_mov_b32 s11, 0")
    a("s_lshl_b32 s14, s3, 4")
    for j in range(5):
        r = 4 + j
        a(f"v_add_u32 v16, {64*j}, v1")
        a("v_mul_u32_u24 v17, 57, v16")
        a("v_lshrrev_b32 v17, 10, v17")
        a("v_mul_u32_u24 v18, 18, v17")
        a("v_sub_u32 v18, v16, v18")
        a("v_and_b32 v19, 3, v17")
        a("v_and_b32 v20, 4, v17")
        a("v_lshl_or_b32 v19, v20, 1, v19")
        a("v_and_b32 v20, 8, v17")
        a("v_lshrrev_b32 v20, 1, v20")
        a("v_or_b32 v19, v19, v20")
        a("v_add_u32 v19, s14, v19")
        a("v_mul_u32_u24 v19, 3456, v19")
        a("v_lshl_add_u32 v19, v18, 4, v19")
        a(f"v_add_u32 v{r}, s7, v19")
        if 0 < j < 4: a(f"v_subrev_u32 v{r}, {1024*j}, v{r}")
    for u in range(288): assert (u * 57) >> 10 == u // 18, u
    a("v_lshrrev_b32 v16, 3, v1")
    a("v_lshrrev_b32 v17, 2, v16")
    a("v_lshlrev_b32 v17, 3, v17")
    a("v_and_b32 v18, 3, v16")
    a("v_add_u32 v17, v17, v18")
    a("s_lshl_b32 s14, s6, 5")
    a("v_add_u32 v17, s14, v17")
    a("v_mul_u32_u24 v17, 1152, v17")
    a("v_lshrrev_b32 v18, 4, v1")
    a("v_xor_b32 v18, v18, v1")
    a("v_and_b32 v18, 7, v18")
    a("v_xor_b32 v19, 4, v18")
    a("v_lshl_add_u32 v18, v18, 4, v17")
    a("v_lshl_add_u32 v19, v19, 4, v17")
    for j in range(4):
        srow = 16 * (j & 1) + 4 * (j >> 1)
        a(f"v_add_u32 v{9+j}, {srow*1152 - 1024*j}, v{18 + (j&1)}")
    a("s_waitcnt lgkmcnt(0)")
    srd(a, 40, P_X, 2048 * 1152)
    srd(a, 44, P_W, 576 * 3456)
    vm = VmTrack(a)
    def issue(c):
        slot = c % NB1
        a(f"s_add_u32 m0, s8, {slot*CH1}")
        a(f"s_mov_b32 s9, {c*64*3456}")
        for j in range(4):
            vm.issue(f"buffer_load_dwordx4 v{4+j}, s[44:47], s9 offen offset:{j*1024} lds", c)
        a(f"s_add_u32 m0, s8, {slot*CH1+4096}")
        a("s_mov_b64 exec, s[10:11]")
        vm.issue(f"buffer_load_dwordx4 v8, s[44:47], s9 offen lds", c)
        a("s_mov_b64 exec, -1")
        a(f"s_add_u32 m0, s12, {slot*CH1}")
        a(f"s_movk_i32 s9, {c*128}")
        for j in range(4):
            vm.issue(f"buffer_load_dwordx4 v{9+j}, s[40:43], s9 offen offset:{j*1024} lds", c)
    st()
    issue(0); issue(1)
    st()
    for c in range(9):
        vm.wait(c); st(); a("s_barrier")
        if c + 2 < 9: issue(c + 2)
    st(); st.flush(15, 8)
    a("s_endpgm")

def k1_gemm(a, variant, st):
    XB = 16
    WB = XB + 16
    AB = WB + 36
    lg = LgTrack(a)
    def xreg(gk, F): return XB + ((gk & 1) * 2 + F) * 4
    def accr(t, F): return AB + (t * 2 + F) * 4
    def reads(gf):
        c, f = divmod(gf, 18)
        ks, t = divmod(f, 9)
        slot = c % NB1
        hi = 4 if slot >= 2 else 0
        so = (slot & 1) * CH1
        out = []
        if t == 0:
            for F in range(2):
                out.append((f"ds_read_b128 {v(xreg(c*2+ks,F),4)}, v{4+ks+hi} offset:{so + 2048*F}", gf))
        if variant == "qk":
            if t < 8: base, co = 2 + hi, 72 * (t >> 1) + 8 * (t & 1)
            else: base, co = 3 + hi, 32
        else:
            base, co = 2 + hi, 32 * t
        r = WB + (gf % 9) * 4
        for rr in range(2):
            out.append((f"ds_read_b64_tr_b16 {v(r+2*rr,2)}, v{base} offset:{so + (32*ks+8*rr)*288 + co}", gf))
        return out
    D = 6
    st()
    a("s_barrier")
    st()
    for gf in range(D):
        for t_, tag in reads(gf): lg.issue(t_, tag)
    for c in range(9):
        for f in range(18):
            gf = c * 18 + f
            ks, t = divmod(f, 9)
            if f == 18 - D and c < 8:
                a("s_barrier")
                st()
            lg.wait(gf)
            rd = reads(gf + D) if gf + D < 162 else []
            w = WB + (gf % 9) * 4
            half = (len(rd) + 1) // 2
            for F in range(2):
                cc = "0" if (c == 0 and ks == 0) else v(accr(t, F), 4)
                if variant == "qk":
                    a(f"v_mfma_f32_16x16x32_bf16 {v(accr(t,F),4)}, {v(w,4)}, {v(xreg(c*2+ks,F),4)}, {cc}")
                else:
                    a(f"v_mfma_f32_16x16x32_bf16 {v(accr(t,F),4)}, {v(xreg(c*2+ks,F),4)}, {v(w,4)}, {cc}")
                for t_, tag in (rd[:half] if F == 0 else rd[half:]): lg.issue(t_, tag)
    st()
    return AB, XB

def k1():
    a = Asm()
    st = Stamps(a, 0)
    st(real=True); st()
    prologue(a)
    a("v_and_b32 v1, 63, v0")
    a("v_lshrrev_b32 v13, 6, v0")
    a("v_readfirstlane_b32 s15, v13")
    a("s_cmp_ge_u32 s2, 192")
    a("s_cbranch_scc1 K1_STAGE1")
    a("s_and_b32 s3, s15, 3")
    a("s_and_b32 s12, s2, 7")
    a("s_lshr_b32 s13, s2, 3")
    a("s_lshr_b32 s4, s13, 3")
    a("s_and_b32 s5, s12, 3")
    a("s_lshr_b32 s14, s12, 2")
    a("s_and_b32 s13, s13, 7")
    a("s_lshl_b32 s14, s14, 3")
    a("s_add_u32 s13, s13, s14")
    a("s_lshl_b32 s6, s13, 2")
    a("s_add_u32 s6, s6, s3")
    a("s_mul_i32 s7, s4, 1152")
    a("s_mul_i32 s14, s5, 288")
    a("s_add_u32 s7, s7, s14")
    a("s_cmp_lt_u32 s15, 4")
    a("s_cbranch_scc1 K1_COMP")
    k1_loader(a, st)
    a.label("K1_COMP")
    st.reset(2)
    a("v_and_b32 v14, 15, v1")
    a("v_lshrrev_b32 v15, 4, v1")
    a("v_lshrrev_b32 v16, 1, v14")
    a("v_xor_b32 v16, v16, v15")
    a("v_lshlrev_b32 v16, 4, v16")
    a("v_lshl_add_u32 v16, v14, 7, v16")
    a("s_lshl_b32 s12, s3, 12")
    a(f"s_add_u32 s12, s12, {CW1}")
    a("v_add_u32 v4, s12, v16")
    a("v_xor_b32 v5, 64, v4")
    a(f"v_add_u32 v8, {2*CH1}, v4")
    a(f"v_add_u32 v9, {2*CH1}, v5")
    a("v_lshrrev_b32 v16, 1, v15")
    a("v_lshlrev_b32 v16, 4, v16")
    a("v_and_b32 v17, 1, v15")
    a("v_lshl_add_u32 v16, v17, 2, v16")
    a("v_lshrrev_b32 v17, 2, v14")
    a("v_add_u32 v16, v16, v17")
    a("v_mul_u32_u24 v16, 288, v16")
    a("v_and_b32 v17, 3, v14")
    a("s_waitcnt lgkmcnt(0)")
    srd(a, 48, P_WS, WS_END)
    a("s_cmp_eq_u32 s4, 2")
    a("s_cbranch_scc1 K1_V")
    a("v_lshrrev_b32 v18, 1, v17")
    a("v_mul_u32_u24 v18, 40, v18")
    a("v_and_b32 v19, 1, v17")
    a("v_lshl_add_u32 v18, v19, 4, v18")
    a("v_add_u32 v2, v16, v18")
    a("v_mul_u32_u24 v18, 72, v17")
    a("v_add_u32 v3, v16, v18")
    a(f"v_add_u32 v6, {2*CH1}, v2")
    a(f"v_add_u32 v7, {2*CH1}, v3")
    a("s_cmp_eq_u32 s4, 0")
    a(f"s_movk_i32 s12, {TSKV}")
    a(f"s_cselect_b32 s12, {TSQ}, s12")
    a(f"s_cselect_b32 s13, {WS_Q}, {WS_KV}")
    a("s_lshl_b32 s9, s5, 9")
    a("s_add_u32 s9, s9, s6")
    a("s_mul_i32 s9, s9, s12")
    a("s_add_u32 s13, s13, s9")
    a("s_lshl_b32 s12, s12, 6")
    a("v_and_b32 v16, 7, v14")
    a("v_lshrrev_b32 v17, 3, v14")
    a("v_lshl_add_u32 v16, v17, 4, v16")
    a("v_lshrrev_b32 v17, 1, v15")
    a("v_mul_lo_u32 v17, v17, s12")
    a("v_and_b32 v18, 1, v15")
    a("v_lshl_add_u32 v17, v18, 9, v17")
    a("v_lshl_add_u32 v17, v16, 4, v17")
    a("v_add_u32 v10, s13, v17")
    a("v_lshlrev_b32 v17, 1, v15")
    a("v_mul_lo_u32 v17, v17, s12")
    a("v_lshl_add_u32 v17, v16, 2, v17")
    a("v_add_u32 v11, s13, v17")
    a("s_lshl_b32 s9, s12, 1")
    AB, XB = k1_gemm(a, "qk", st)
    def accr(t, F): return AB + (t * 2 + F) * 4
    a("s_cmp_lg_u32 s4, 0")
    a("s_cbranch_scc1 K1_NOSCALE")
    a(f"s_mov_b32 s10, {hex(f32bits(QSCALE))}")
    a("s_mov_b32 s11, s10")
    for i in range(36):
        a(f"v_pk_mul_f32 {v(AB+2*i,2)}, {v(AB+2*i,2)}, s[10:11]")
    a.label("K1_NOSCALE")
    a("s_mov_b32 s8, 0")
    T = XB
    for P in range(4):
        for F in range(2):
            r = T + (P * 2 + F) * 4
            for h in range(2):
                A = accr(2 * P + h, F)
                a(f"v_cvt_pk_bf16_f32 v{r+2*h}, v{A}, v{A+1}")
                a(f"v_cvt_pk_bf16_f32 v{r+2*h+1}, v{A+2}, v{A+3}")
            a(f"buffer_store_dwordx4 {v(r,4)}, v10, s[48:51], s8 offen offset:{128*F}")
        if P < 3: a("s_add_u32 s8, s8, s9")
    for F in range(2):
        r = T + 32 + 2 * F
        A = accr(8, F)
        a(f"v_cvt_pk_bf16_f32 v{r}, v{A}, v{A+1}")
        a(f"v_cvt_pk_bf16_f32 v{r+1}, v{A+2}, v{A+3}")
        a(f"buffer_store_dword v{r}, v11, s[48:51], 0 offen offset:{1024+32*F}")
        a(f"buffer_store_dword v{r+1}, v11, s[48:51], s12 offen offset:{1024+32*F}")
    st()
    if STAMP: a("s_waitcnt vmcnt(0)")
    st(); st.flush(15, 8)
    a("s_endpgm")
    a.label("K1_V")
    st.reset(2)
    a("v_lshl_add_u32 v2, v17, 3, v16")
    a(f"v_add_u32 v6, {2*CH1}, v2")
    a("s_lshl_b32 s9, s5, 9")
    a("s_add_u32 s9, s9, s6")
    a(f"s_mul_i32 s9, s9, {TSKV}")
    a(f"s_add_u32 s13, s9, {WS_KV + 1152}")
    a("v_and_b32 v16, 7, v1")
    a(f"s_mov_b32 s12, {64*TSKV}")
    a("v_mul_lo_u32 v16, v16, s12")
    a("v_lshrrev_b32 v17, 3, v1")
    a("v_mul_u32_u24 v17, 304, v17")
    a("v_add3_u32 v16, v16, v17, s13")
    for i in range(4): a(f"v_mov_b32 v{20+i}, 0x3f803f80")
    a("s_mov_b32 exec_hi, 0")
    a("buffer_store_dwordx4 v[20:23], v16, s[48:51], 0 offen offset:288")
    a("s_mov_b32 exec_hi, -1")
    a(f"s_mov_b32 s12, {64*TSKV - 288}")
    a("v_mul_u32_u24 v16, 304, v15")
    a("v_lshl_add_u32 v16, v14, 4, v16")
    a("v_add_u32 v16, s13, v16")
    EA = 16 + 16 + 36 + 72
    for t in range(9):
        a(f"v_add_u32 v17, {16*t}, v14")
        a("v_mul_u32_u24 v17, 57, v17")
        a("v_lshrrev_b32 v17, 10, v17")
        a("v_mul_lo_u32 v17, v17, s12")
        a(f"v_add_u32 v{EA+t}, v16, v17")
    AB, XB = k1_gemm(a, "v", st)
    assert AB + 72 == EA
    T = XB
    for t in range(9):
        r = T + t * 4
        for F in range(2):
            A = accr(t, F)
            a(f"v_cvt_pk_bf16_f32 v{r+2*F}, v{A}, v{A+1}")
            a(f"v_cvt_pk_bf16_f32 v{r+2*F+1}, v{A+2}, v{A+3}")
        a(f"buffer_store_dwordx4 {v(r,4)}, v{EA+t}, s[48:51], 0 offen offset:{256*t}")
    st()
    if STAMP: a("s_waitcnt vmcnt(0)")
    st(); st.flush(15, 8)
    a("s_endpgm")
    a.label("K1_STAGE1")
    st.reset(2)
    a("s_cmp_ge_u32 s2, 228")
    a("s_cbranch_scc1 K1_END")
    a("s_sub_u32 s4, s2, 192")
    a("s_lshl_b32 s4, s4, 3")
    a("s_add_u32 s4, s4, s15")
    a("s_mul_i32 s5, s4, 57")
    a("s_lshr_b32 s5, s5, 9")
    for u in range(288): assert (u * 57) >> 9 == u // 9
    a("s_mul_i32 s6, s5, 9")
    a("s_sub_u32 s6, s4, s6")
    a("v_and_b32 v10, 7, v1")
    a("v_lshrrev_b32 v11, 3, v1")
    a("s_lshl_b32 s7, s5, 3")
    a("v_add_u32 v3, s7, v11")
    a("s_lshl_b32 s8, s6, 3")
    a("v_add_u32 v2, s8, v10")
    a("v_mul_u32_u24 v5, 9216, v3")
    a("v_lshl_add_u32 v5, v2, 4, v5")
    a("v_subrev_u32 v4, 4608, v5")
    a("v_add_u32 v6, 4608, v5")
    a("v_lshlrev_b32 v7, 6, v2")
    a("v_xor_b32 v12, v10, v11")
    a("v_lshl_add_u32 v13, v10, 3, v12")
    a("s_lshl_b32 s9, s15, 12")
    a("v_lshl_add_u32 v13, v13, 4, s9")
    a("v_lshl_add_u32 v14, v1, 4, s9")
    a("v_add_u32 v8, s8, v11")
    a("v_lshlrev_b32 v8, 16, v8")
    a("v_add_u32 v9, s7, v12")
    a("v_lshlrev_b32 v9, 4, v9")
    a("v_sub_u32 v8, v8, v9")
    a(f"v_add_u32 v8, {WS_U + 4080}, v8")
    a("s_waitcnt lgkmcnt(0)")
    srd(a, 40, P_BK, 2048 * 1152)
    srd(a, 44, P_BV, 2048 * 1152)
    srd(a, 48, P_SH, 576 * 8)
    srd(a, 52, P_WS, WS_END)
    KB = 16; VB = KB + 48; SB = VB + 36; WF = SB + 16
    for j in range(4):
        a(f"buffer_load_dwordx4 {v(SB+4*j,4)}, v7, s[48:51], 0 offen offset:{16*j}")
    for r in range(12):
        a(f"buffer_load_dwordx4 {v(KB+4*r,4)}, v{4+r//4}, s[40:43], 0 offen offset:{1152*(r%4)}")
    for r in range(9):
        rr = r + 3
        a(f"buffer_load_dwordx4 {v(VB+4*r,4)}, v{4+rr//4}, s[44:47], 0 offen offset:{1152*(rr%4)}")
    a("s_mov_b32 s9, 0xffff0000")
    a("s_waitcnt vmcnt(21)")
    for j in range(8):
        p = j >> 1
        for tap in range(4):
            src = SB + 2 * j + (tap >> 1)
            dst = WF + (p * 4 + tap) * 2 + (j & 1)
            if tap & 1: a(f"v_and_b32 v{dst}, s9, v{src}")
            else: a(f"v_lshlrev_b32 v{dst}, 16, v{src}")
    KF = WF + 32; VF = KF + 24; UF = VF + 18; OB = UF + 18; RB = OB + 16
    st()
    a("s_waitcnt vmcnt(0)")
    st()
    def flush_stores(p):
        a("s_waitcnt lgkmcnt(0)")
        for e in range(2):
            for ver in range(2):
                a(f"s_mov_b32 s10, {(2*p+e)*8192 + ver*4096}")
                a(f"buffer_store_dwordx4 {v(RB+(e*2+ver)*4,4)}, v8, s[52:55], s10 offen")
    for p in range(4):
        for r in range(12):
            a(f"v_lshlrev_b32 v{KF+2*r}, 16, v{KB+4*r+p}")
            a(f"v_and_b32 v{KF+2*r+1}, s9, v{KB+4*r+p}")
        if p > 0: flush_stores(p - 1)
        for r in range(9):
            a(f"v_lshlrev_b32 v{VF+2*r}, 16, v{VB+4*r+p}")
            a(f"v_and_b32 v{VF+2*r+1}, s9, v{VB+4*r+p}")
        W = lambda tap: v(WF + (p * 4 + tap) * 2, 2)
        for r in range(9):
            a(f"v_pk_mul_f32 {v(UF+2*r,2)}, {v(KF+2*r,2)}, {W(3)}")
        for tap in (2, 1, 0):
            for r in range(9):
                a(f"v_pk_fma_f32 {v(UF+2*r,2)}, {v(KF+2*(r+3-tap),2)}, {W(tap)}, {v(UF+2*r,2)}")
        for r in range(9):
            a(f"v_pk_mul_f32 {v(UF+2*r,2)}, {v(UF+2*r,2)}, {v(VF+2*r,2)}")
        for e in range(2):
            for ver in range(2):
                o = OB + (e * 2 + ver) * 4
                for dw in range(4):
                    hi_r = 7 + ver - 2 * dw
                    a(f"v_cvt_pk_bf16_f32 v{o+dw}, v{UF+2*hi_r+e}, v{UF+2*(hi_r-1)+e}")
                a(f"ds_write_b128 v13, {v(o,4)} offset:{(e*2+ver)*1024}")
        for q in range(4):
            a(f"ds_read_b128 {v(RB+q*4,4)}, v14 offset:{q*1024}")
    flush_stores(3)
    st()
    if STAMP: a("s_waitcnt vmcnt(0)")
    st(); st.flush(15, 8)
    a.label("K1_END")
    a("s_endpgm")
    return a


SC2 = 4160; SV2 = 4576; UO2 = 4 * SC2; CHN2 = 4 * SC2 + 2 * SV2
LDS2 = 2 * CHN2
def swap23(x): return (x & ~12) | ((x & 4) << 1) | ((x & 8) >> 1)

def k2_conv(a, st):
    a("s_and_b32 s3, s15, 1")
    a("s_lshr_b32 s13, s15, 1")
    a("s_lshl_b32 s12, s2, 1")
    a("s_add_u32 s12, s12, s13")
    a(f"s_mul_i32 s13, s13, {CHN2}")
    a("v_lshlrev_b32 v2, 4, v1")
    a("v_and_b32 v14, 15, v1")
    a("v_lshrrev_b32 v15, 4, v1")
    a("v_add_u32 v3, v14, v15")
    a("v_subrev_u32 v3, 15, v3")
    a("v_lshlrev_b32 v3, 2, v3")
    a(f"v_mul_u32_u24 v4, {SC2}, v15")
    a("v_lshl_add_u32 v4, v14, 2, v4")
    a("v_add_u32 v4, s13, v4")
    a("v_and_b32 v5, 3, v14")
    a(f"v_mul_u32_u24 v5, {SC2}, v5")
    a("v_lshrrev_b32 v6, 2, v14")
    a("v_add_u32 v6, v6, v15")
    a("v_lshl_add_u32 v5, v6, 4, v5")
    a("s_lshl_b32 s14, s3, 8")
    a("s_add_u32 s14, s14, s13")
    a("v_add_u32 v5, s14, v5")
    a("v_and_b32 v6, 1, v14")
    a(f"v_mul_u32_u24 v6, {SV2}, v6")
    a("v_lshrrev_b32 v7, 1, v14")
    a("v_lshlrev_b32 v7, 6, v7")
    a("v_sub_u32 v6, v6, v7")
    a("v_lshl_add_u32 v6, v15, 4, v6")
    a(f"s_add_u32 s14, s14, {UO2 + 448}")
    a("v_add_u32 v6, s14, v6")
    a(f"s_mul_i32 s14, s3, {SV2}")
    a("s_add_u32 s14, s14, s13")
    a(f"s_add_u32 s14, s14, {UO2}")
    a("v_add_u32 v7, s14, v2")
    for i in range(4): a(f"v_mov_b32 v{16+i}, 0")
    a("s_mov_b32 exec_lo, 0x3fffffff")
    a("s_mov_b32 exec_hi, 0")
    a("ds_write_b128 v7, v[16:19] offset:4096")
    a("s_mov_b64 exec, -1")
    a("s_waitcnt lgkmcnt(0)")
    a("s_lshl_b32 s40, s12, 12")
    a(f"s_sub_u32 s41, {576*4096}, s40")
    a(f"s_add_u32 s4, s{P_SK}, s40")
    a(f"s_addc_u32 s5, s{P_SK+1}, 0")
    a("s_mov_b32 s6, s41")
    a("s_mov_b32 s7, 0x00020000")
    srd(a, 8, P_WS, WS_END)
    a("s_lshl_b32 s41, s2, 2")
    a(f"s_load_dword s42, s[{P_SD}:{P_SD+1}], s41")
    a("s_mov_b32 m0, s14")
    a("s_lshl_b32 s41, s40, 1")
    a("s_lshl_b32 s43, s3, 12")
    a("s_add_u32 s41, s41, s43")
    a(f"s_add_u32 s41, s41, {WS_U}")
    for j in range(4):
        a(f"buffer_load_dwordx4 v2, s[8:11], s41 offen offset:{1024*j} lds")
    a(f"s_mul_i32 s43, s3, {2*SC2}")
    a("s_add_u32 s43, s43, s13")
    a("s_lshl_b32 s44, s3, 3")
    for cc in range(2):
        a(f"s_add_u32 m0, s43, {cc*SC2 + 64}")
        a(f"s_add_u32 s45, s44, {4*cc + 4}")
        for j in range(4):
            a(f"buffer_load_dwordx4 v2, s[4:7], s45 offen offset:{1024*j} lds")
    a("buffer_load_dword v16, v3, s[4:7], 0 offen")
    st()
    a("s_waitcnt vmcnt(0)")
    a("ds_write_b32 v4, v16")
    a("s_waitcnt lgkmcnt(0)")
    st()
    a("s_barrier")
    st()
    HB = 16; UB = HB + 32; AB = UB + 32
    lg = LgTrack(a)
    def rdH(it, c): lg.issue(f"ds_read_b128 {v(HB+4*c,4)}, v5 offset:{512*c + 64*it}", ("H", it, c))
    def rdU(it, d): lg.issue(f"ds_read_b128 {v(UB+4*d,4)}, v6 offset:{3584 - 512*d + 64*it}", ("U", it, d))
    rdH(0, 0)
    for d in range(7, -1, -1): rdU(0, d)
    for c in range(1, 6): rdH(0, c)
    pend = [("H", 0, 6), ("H", 0, 7)]
    for it in range(4):
        for c in range(8):
            js = list(range(7, c - 1, -1))
            for j in js:
                d = j - c
                lg.wait(("H", it, c), ("U", it, d))
                cc = "0" if (it == 0 and c == 0) else v(AB + 4 * j, 4)
                a(f"v_mfma_f32_16x16x32_bf16 {v(AB+4*j,4)}, {v(UB+4*d,4)}, {v(HB+4*c,4)}, {cc}")
                if it < 3:
                    if j == 7: pend.append(("U", it + 1, d))
                    if j == c: pend.append(("H", it + 1, c))
                if pend and len(lg.q) < 14:
                    k, i2, x = pend.pop(0)
                    (rdH if k == "H" else rdU)(i2, x)
        while pend and it < 3 and len(lg.q) < 14:
            k, i2, x = pend.pop(0)
            (rdH if k == "H" else rdU)(i2, x)
    st()
    a("s_barrier")
    a("s_lshl_b32 s14, s3, 12")
    a("s_add_u32 s14, s14, s13")
    a("v_add_u32 v7, s14, v2")
    a("v_xor_b32 v8, 0x1000, v2")
    a("s_xor_b32 s43, s3, 1")
    a("s_lshl_b32 s43, s43, 12")
    a("s_add_u32 s43, s43, s13")
    a("v_add_u32 v8, s43, v2")
    a("v_lshlrev_b32 v9, 7, v15")
    a("v_lshl_add_u32 v9, v14, 2, v9")
    a("s_lshl_b32 s43, s3, 11")
    a(f"s_add_u32 s44, s13, {UO2 + SV2 + 4092 - 1536 - 64}")
    a("s_sub_u32 s44, s44, s43")
    a("v_sub_u32 v10, s44, v9")
    a(f"s_add_u32 s44, s40, s43")
    a(f"s_add_u32 s44, s44, {WS_Y}")
    a("s_cmp_eq_u32 s3, 0")
    a("s_cbranch_scc1 K2C_P0")
    for jj in range(4): a(f"ds_write_b128 v7, {v(AB+4*jj,4)} offset:{1024*jj}")
    for i in range(8): a(f"v_pk_mov_b32 {v(AB+2*i,2)}, {v(AB+16+2*i,2)}, {v(AB+16+2*i,2)} op_sel:[0,1]")
    a("s_branch K2C_J")
    a.label("K2C_P0")
    for jj in range(4): a(f"ds_write_b128 v7, {v(AB+16+4*jj,4)} offset:{1024*jj}")
    a.label("K2C_J")
    for jj in range(4):
        for hi in range(2):
            a(f"ds_read_b32 v{UB+2*jj+hi}, v10 offset:{1536 - 512*jj + 64 - 64*hi}")
    a("s_waitcnt lgkmcnt(0)")
    a("s_barrier")
    for jj in range(4): a(f"ds_read_b128 {v(HB+4*jj,4)}, v8 offset:{1024*jj}")
    a("s_lshr_b32 s45, s15, 1")
    a("s_cmp_eq_u32 s45, 0")
    a("s_cselect_b32 s45, 16, 0")
    a("s_lshl_b32 s42, s42, s45")
    a("s_and_b32 s42, s42, 0xffff0000")
    a("s_mov_b32 s45, 0xffff0000")
    for jj in range(4):
        for hi in range(2):
            u = UB + 2 * jj + hi
            t = UB + 8 + 2 * (2 * jj + hi)
            a(f"v_and_b32 v{t}, s45, v{u}")
            a(f"v_lshlrev_b32 v{t+1}, 16, v{u}")
            a(f"v_fmac_f32 v{AB+4*jj+2*hi}, s42, v{t}")
            a(f"v_fmac_f32 v{AB+4*jj+2*hi+1}, s42, v{t+1}")
    a("s_waitcnt lgkmcnt(0)")
    for jj in range(4):
        for hi in range(2):
            r = AB + 4 * jj + 2 * hi
            a(f"v_pk_add_f32 {v(r,2)}, {v(r,2)}, {v(HB+4*jj+2*hi,2)}")
            a(f"v_cvt_pk_bf16_f32 v{UB+2*jj+hi}, v{r}, v{r+1}")
            a(f"buffer_store_dword v{UB+2*jj+hi}, v9, s[8:11], s44 offen offset:{512*jj + 64*hi}")
    st()
    if STAMP: a("s_waitcnt vmcnt(0)")
    st(); st.flush(15, 4)
    a("s_endpgm")

def k2_attn(a, st):
    MK = 40
    a("s_sub_u32 s3, s2, 288")
    a("s_and_b32 s12, s3, 7")
    a("s_lshr_b32 s13, s3, 3")
    a("s_and_b32 s14, s12, 3")
    a("s_lshl_b32 s14, s14, 3")
    a("s_and_b32 s4, s13, 7")
    a("s_add_u32 s4, s4, s14")
    a("s_lshr_b32 s12, s12, 2")
    a("s_lshl_b32 s12, s12, 3")
    a("s_lshr_b32 s13, s13, 3")
    a("s_sub_u32 s12, s12, s13")
    a("s_add_u32 s12, s12, 7")
    a("s_lshl_b32 s12, s12, 2")
    a("s_add_u32 s3, s12, s15")
    a("s_mov_b32 s14, s4")
    a("s_sub_u32 s12, s12, 8")
    a(f"s_mul_i32 s12, s12, {TSKV}")
    a("s_mul_i32 s13, s15, 7168")
    a("s_add_u32 s12, s12, s13")
    a("v_lshlrev_b32 v2, 4, v1")
    a("v_add_u32 v7, s12, v2")
    a("s_lshl_b32 s12, s14, 6")
    a("s_add_u32 s12, s12, s3")
    a(f"s_mul_i32 s12, s12, {TSQ}")
    a("v_and_b32 v8, 31, v1")
    a("v_lshlrev_b32 v3, 2, v8")
    a("s_waitcnt lgkmcnt(0)")
    a(f"s_mul_i32 s72, s14, {64*TSKV}")
    a(f"s_add_u32 s72, s72, {WS_KV}")
    srd(a, 4, P_WS, 64 * TSKV, "s72")
    srd(a, 8, P_WS, WS_END)
    QM = 12; QT = 16; KA = 20; VA = 36; S = [52, 68, 84]; CBk = 100; O = 116
    a("s_mov_b32 m0, s13")
    for j in range(7):
        a("buffer_load_dwordx4 v7, s[4:7], 0 offen lds")
        if j < 6:
            a("s_add_u32 m0, m0, 1024")
            a("v_add_u32 v7, 1024, v7")
    a(f"buffer_load_dwordx4 {v(QM,4)}, v2, s[8:11], s12 offen")
    a(f"buffer_load_dword v{QT}, v3, s[8:11], s12 offen offset:1024")
    st()
    a(f"s_mul_i32 s13, s15, {TSKV}")
    a("v_add_u32 v2, s13, v2")
    a("v_add_u32 v3, s13, v3")
    a("v_and_b32 v4, 3, v8")
    a("v_and_b32 v5, 4, v8")
    a("v_lshl_or_b32 v4, v5, 1, v4")
    a("v_and_b32 v5, 8, v8")
    a("v_lshrrev_b32 v5, 1, v5")
    a("v_or_b32 v4, v4, v5")
    a("v_min_u32 v5, 18, v8")
    a("v_cmp_gt_u32 vcc, 16, v8")
    a("v_cndmask_b32 v4, v5, v4, vcc")
    a("v_lshrrev_b32 v9, 5, v1")
    a("v_mul_u32_u24 v5, 304, v9")
    a("v_lshl_add_u32 v4, v4, 4, v5")
    a("s_add_u32 s13, s13, 1152")
    a("v_add_u32 v4, s13, v4")
    a("v_lshrrev_b32 v5, 4, v8")
    a("v_lshlrev_b32 v5, 14, v5")
    a("v_lshl_add_u32 v5, v9, 8, v5")
    a("v_and_b32 v6, 15, v8")
    a("v_lshl_add_u32 v5, v6, 4, v5")
    a("s_lshl_b32 s12, s3, 15")
    a("s_lshl_b32 s13, s14, 9")
    a("s_add_u32 s12, s12, s13")
    a(f"s_add_u32 s12, s12, {WS_OM}")
    a("v_lshlrev_b32 v6, 2, v8")
    a("s_lshl_b32 s13, s14, 13")
    a("s_lshl_b32 s73, s3, 7")
    a("s_add_u32 s13, s13, s73")
    a(f"s_add_u32 s13, s13, {WS_OT}")
    for r in range(16):
        m = 0
        for l in range(64):
            j = (r & 7) + 8 * (l >> 5) + 16 * (r >> 3)
            if j <= swap23(l & 31): m |= 1 << l
        a(f"s_mov_b32 s{MK+2*r}, {hex(m & 0xffffffff)}")
        a(f"s_mov_b32 s{MK+2*r+1}, {hex(m >> 32)}")
    for b in range(2):
        for i in (6, 7): a(f"v_mov_b32 v{KA+8*b+i}, 0")
    a(f"v_mov_b32 v{QT+2}, 0")
    a(f"v_mov_b32 v{QT+3}, 0")
    a("v_cmp_gt_u32 vcc, 32, v1")
    a(f"v_mov_b32 v{QT+1}, 0x3f80")
    a(f"v_cndmask_b32 v{QT+1}, 0, v{QT+1}, vcc")
    a("s_waitcnt vmcnt(0)")
    a(f"v_cndmask_b32 v{QT}, 0, v{QT}, vcc")
    st()
    a("s_barrier")
    st()
    lg = LgTrack(a)
    kcount = [0]
    def rdK(t, tag):
        b = kcount[0] & 1; kcount[0] += 1
        lg.issue(f"ds_read_b128 {v(KA+8*b,4)}, v2 offset:{t*TSKV}", tag)
        lg.issue(f"ds_read_b32 v{KA+8*b+4}, v3 offset:{t*TSKV+1024}", tag)
        return b
    def qk(t, b, tag, D, C):
        if t < 8:
            a(f"s_cmp_ge_u32 s3, {8-t}")
            a("s_cselect_b32 s72, 0, 0xf149")
            a(f"v_mov_b32 v{KA+8*b+5}, s72")
        else:
            a(f"v_mov_b32 v{KA+8*b+5}, 0")
        lg.wait(tag)
        a(f"v_mfma_f32_32x32x16_bf16 {v(D,16)}, {v(KA+8*b,4)}, {v(QM,4)}, {C}")
        a(f"v_mfma_f32_32x32x16_bf16 {v(D,16)}, {v(KA+8*b+4,4)}, {v(QT,4)}, {v(D,16)}")
    MX = 10
    def maxes(R, first):
        for i in range(8):
            m = MX + (i & 1)
            if first and i < 2: a(f"v_max_f32 v{m}, v{R+2*i}, v{R+2*i+1}")
            else: a(f"v_max3_f32 v{m}, v{R+2*i}, v{R+2*i+1}, v{m}")
    order = [8, 0, 1, 2, 3, 4, 5, 6, 7]
    bufs = {}
    bufs[0] = rdK(order[0], ("k1", 0)); bufs[1] = rdK(order[1], ("k1", 1))
    dst = lambda n: S[0] if n == 0 else S[1 + ((n - 1) & 1)]
    for n, t in enumerate(order):
        qk(t, bufs[n], ("k1", n), dst(n), "0")
        if n + 2 < 9: bufs[n + 2] = rdK(order[n + 2], ("k1", n + 2))
        if n == 2:
            for r in range(16):
                a(f"v_cndmask_b32 v{S[0]+r}, v{S[1]+r}, v{S[0]+r}, s[{MK+2*r}:{MK+2*r+1}]")
            maxes(S[0], True)
        elif n > 2:
            maxes(dst(n - 1), False)
    b2 = {}
    b2[1] = rdK(1, ("k2", 1)); b2[2] = rdK(2, ("k2", 2))
    def rdV(t, vb, tag):
        for hf in range(2):
            lg.issue(f"ds_read_b128 {v(VA+8*vb+4*hf,4)}, v4 offset:{t*TSKV + 608*hf}", tag)
    rdV(8, 0, ("v", 8)); rdV(0, 1, ("v", 0))
    maxes(dst(8), False)
    a(f"v_max_f32 v{MX}, v{MX}, v{MX+1}")
    a(f"v_mov_b32 v{MX+1}, v{MX}")
    a(f"v_permlane32_swap_b32 v{MX}, v{MX+1}")
    a(f"v_max_f32 v{MX}, v{MX}, v{MX+1}")
    a(f"v_sub_f32 v{CBk}, 0, v{MX}")
    a(f"v_sub_f32 v{CBk+1}, 0, v{MX}")
    for i in range(1, 8): a(f"v_pk_mov_b32 {v(CBk+2*i,2)}, {v(CBk,2)}, {v(CBk,2)} op_sel:[0,1]")
    st()
    qk(1, b2[1], ("k2", 1), S[1], v(CBk, 16))
    b2[3] = rdK(3, ("k2", 3))
    for i in range(8): a(f"v_pk_add_f32 {v(S[0]+2*i,2)}, {v(S[0]+2*i,2)}, {v(CBk,2)}")
    for r in range(16): a(f"v_exp_f32 v{S[0]+r}, v{S[0]+r}")
    for r in range(16): a(f"v_cndmask_b32 v{S[2]+r}, 0, v{S[0]+r}, s[{MK+2*r}:{MK+2*r+1}]")
    for i in range(8): a(f"v_cvt_pk_bf16_f32 v{S[0]+i}, v{S[0]+2*i}, v{S[0]+2*i+1}")
    for i in range(8): a(f"v_cvt_pk_bf16_f32 v{S[2]+i}, v{S[2]+2*i}, v{S[2]+2*i+1}")
    for i in range(8): a(f"v_xor_b32 v{S[0]+i}, v{S[0]+i}, v{S[2]+i}")
    def pv(P, vb, tag, first=False):
        lg.wait(tag)
        for hf in range(2):
            C = "0" if (first and hf == 0) else v(O, 16)
            a(f"v_mfma_f32_32x32x16_bf16 {v(O,16)}, {v(VA+8*vb+4*hf,4)}, {v(P+4*hf,4)}, {C}")
    pv(S[2], 0, ("v", 8), True)
    rdV(1, 0, ("v", 1))
    pv(S[0], 1, ("v", 0))
    rdV(2, 1, ("v", 2))
    for t in range(1, 8):
        cur = S[t & 1]; nxt = S[(t + 1) & 1]
        if t < 7:
            qk(t + 1, b2[t + 1], ("k2", t + 1), nxt, v(CBk, 16))
            if t + 3 < 8: b2[t + 3] = rdK(t + 3, ("k2", t + 3))
        for r in range(16): a(f"v_exp_f32 v{cur+r}, v{cur+r}")
        for i in range(8): a(f"v_cvt_pk_bf16_f32 v{cur+i}, v{cur+2*i}, v{cur+2*i+1}")
        pv(cur, (t - 1) & 1, ("v", t))
        if t + 2 < 8: rdV(t + 2, (t - 1) & 1, ("v", t + 2))
    st()
    a(f"v_rcp_f32 v{MX}, v{O+10}")
    for i in range(5): a(f"v_pk_mul_f32 {v(O+2*i,2)}, {v(O+2*i,2)}, {v(MX,2)} op_sel_hi:[1,0]")
    for i in range(5): a(f"v_cvt_pk_bf16_f32 v{S[0]+i}, v{O+2*i}, v{O+2*i+1}")
    a(f"buffer_store_dwordx4 {v(S[0],4)}, v5, s[8:11], s12 offen")
    a("s_mov_b32 exec_hi, 0")
    a(f"buffer_store_dword v{S[0]+4}, v6, s[8:11], s13 offen")
    st()
    if STAMP: a("s_waitcnt vmcnt(0)")
    st(); st.flush(15, 4)
    a("s_endpgm")

def k2():
    a = Asm()
    st = Stamps(a, 1, base=74, mx=11)
    st(real=True); st()
    prologue(a)
    a("v_and_b32 v1, 63, v0")
    a("v_lshrrev_b32 v13, 6, v0")
    a("v_readfirstlane_b32 s15, v13")
    a("s_cmp_ge_u32 s2, 288")
    a("s_cbranch_scc1 K2_ATTN")
    k2_conv(a, st)
    a.label("K2_ATTN")
    st.reset(2)
    a("s_cmp_ge_u32 s2, 800")
    a("s_cbranch_scc1 K2_END")
    k2_attn(a, st)
    a.label("K2_END")
    a("s_endpgm")
    return a


CH3 = 12288; EP3 = 9 * CH3; RS3 = 208; LDS3 = EP3 + 4 * 16 * RS3

def k3():
    a = Asm()
    st = Stamps(a, 2)
    st(real=True); st()
    prologue(a)
    a("v_and_b32 v1, 63, v0")
    a("v_lshrrev_b32 v13, 6, v0")
    a("v_readfirstlane_b32 s15, v13")
    a("s_cmp_ge_u32 s2, 192")
    a("s_cbranch_scc1 K3_STAGE3")
    a("s_and_b32 s3, s15, 3")
    a("s_and_b32 s12, s2, 7")
    a("s_lshr_b32 s13, s2, 3")
    a("s_and_b32 s14, s13, 3")
    a("s_lshl_b32 s12, s12, 2")
    a("s_add_u32 s12, s12, s14")
    a("s_lshr_b32 s13, s13, 2")
    a("s_mul_i32 s13, s13, 192")
    a("s_cmp_lt_u32 s15, 4")
    a("s_cbranch_scc1 K3_COMP")
    for u in range(192): assert (u * 171) >> 11 == u // 12
    a("s_mul_i32 s8, s3, 18")
    a("s_lshl_b32 s9, s3, 3")
    for j in range(3):
        a(f"v_add_u32 v16, {64*j}, v1")
        a("v_mul_u32_u24 v17, 171, v16")
        a("v_lshrrev_b32 v17, 11, v17")
        a("v_mul_u32_u24 v18, 12, v17")
        a("v_sub_u32 v18, v16, v18")
        a("v_and_b32 v20, 4, v17")
        a("v_lshrrev_b32 v19, 1, v20")
        a("v_xor_b32 v18, v18, v19")
        a("v_and_b32 v19, 3, v17")
        a("v_lshl_or_b32 v19, v20, 1, v19")
        a("v_and_b32 v20, 8, v17")
        a("v_lshrrev_b32 v20, 1, v20")
        a("v_or_b32 v19, v19, v20")
        a("v_lshlrev_b32 v18, 4, v18")
        a("v_add_u32 v18, s13, v18")
        a("v_add_u32 v20, s8, v19")
        a("v_mul_u32_u24 v20, 1152, v20")
        a(f"v_add_u32 v{2+j}, v20, v18")
        a("v_lshrrev_b32 v20, 1, v19")
        a("v_add_u32 v20, s9, v20")
        a("v_mul_u32_u24 v20, 18, v20")
        a("v_and_b32 v19, 1, v19")
        a("v_add3_u32 v20, v20, v19, 16")
        a("v_mul_u32_u24 v20, 1152, v20")
        a(f"v_add_u32 v{5+j}, v20, v18")
        if j:
            a(f"v_subrev_u32 v{2+j}, {1024*j}, v{2+j}")
            a(f"v_subrev_u32 v{5+j}, {1024*j}, v{5+j}")
    a("s_mul_i32 s8, s3, 3072")
    a("s_waitcnt lgkmcnt(0)")
    srd(a, 40, P_WO, 576 * 1152)
    vm = VmTrack(a)
    st()
    def issue(c):
        a(f"s_add_u32 m0, s8, {c*CH3}")
        a(f"s_mov_b32 s9, {c*72*1152 if c < 8 else 0}")
        for j in range(3):
            vm.issue(f"buffer_load_dwordx4 v{(2 if c < 8 else 5)+j}, s[40:43], s9 offen offset:{1024*j} lds", c)
    LA = 3
    for c in range(LA): issue(c)
    for c in range(9):
        vm.wait(c); st(); a("s_barrier")
        if c + LA < 9: issue(c + LA)
    st.flush(15, 8)
    a("s_endpgm")
    a.label("K3_COMP")
    st.reset(2)
    a("v_and_b32 v14, 15, v1")
    a("v_lshrrev_b32 v15, 4, v1")
    a("v_lshlrev_b32 v2, 4, v1")
    a("v_lshlrev_b32 v3, 15, v15")
    a("v_lshl_add_u32 v3, v14, 2, v3")
    a("s_lshl_b32 s4, s12, 2")
    a("s_add_u32 s4, s4, s3")
    a("s_lshl_b32 s5, s4, 14")
    a(f"s_add_u32 s5, s5, {WS_OM}")
    a("s_lshl_b32 s6, s4, 6")
    a(f"s_add_u32 s6, s6, {WS_OT}")
    a("s_waitcnt lgkmcnt(0)")
    srd(a, 40, P_WS, WS_END)
    srd(a, 44, P_OUT, 2048 * 2304)
    OB = 16; WB = OB + 72; AB = WB + 24
    vm = VmTrack(a)
    for ks in range(16):
        vm.issue(f"buffer_load_dwordx4 {v(OB+4*ks,4)}, v2, s[40:43], s5 offen offset:{1024*(ks&3)}", ks)
        if ks & 3 == 3: a("s_add_u32 s5, s5, 4096")
    for z in range(2):
        for e in range(4):
            a(f"s_add_u32 s7, s6, {(16*z+e)*8192}")
            vm.issue(f"buffer_load_dword v{OB+64+4*z+e}, v3, s[40:43], s7 offen", 16 + z)
    a("v_lshrrev_b32 v4, 1, v15")
    a("v_lshlrev_b32 v4, 4, v4")
    a("v_and_b32 v5, 1, v15")
    a("v_lshl_add_u32 v4, v5, 2, v4")
    a("v_lshrrev_b32 v6, 2, v14")
    a("v_add_u32 v4, v4, v6")
    a("v_mul_u32_u24 v4, 192, v4")
    a("v_and_b32 v6, 3, v14")
    a("v_lshl_add_u32 v4, v6, 3, v4")
    a("v_lshl_add_u32 v4, v5, 5, v4")
    a("v_xor_b32 v5, 32, v4")
    a(f"v_add_u32 v6, {5*CH3}, v4")
    a(f"v_add_u32 v7, {5*CH3}, v5")
    a("v_and_b32 v8, 3, v14")
    a("v_and_b32 v9, 4, v14")
    a("v_lshl_or_b32 v8, v9, 1, v8")
    a("v_and_b32 v9, 8, v14")
    a("v_lshrrev_b32 v9, 1, v9")
    a("v_or_b32 v8, v8, v9")
    a(f"v_mul_u32_u24 v8, {RS3}, v8")
    a("v_lshl_add_u32 v8, v15, 3, v8")
    a(f"s_mul_i32 s7, s3, {16*RS3}")
    a(f"s_add_u32 s7, s7, {EP3}")
    a("v_add_u32 v8, s7, v8")
    EA = AB + 24
    a("s_mul_i32 s8, s4, 36864")
    a("s_add_u32 s8, s8, s13")
    for j in range(3):
        a(f"v_add_u32 v9, {64*j}, v1")
        a("v_mul_u32_u24 v10, 171, v9")
        a("v_lshrrev_b32 v10, 11, v10")
        a("v_mul_u32_u24 v11, 12, v10")
        a("v_sub_u32 v11, v9, v11")
        a("v_lshlrev_b32 v11, 4, v11")
        a(f"v_mul_u32_u24 v12, {RS3}, v10")
        a(f"v_add3_u32 v{EA+j}, v12, v11, s7")
        a("v_mul_u32_u24 v12, 2304, v10")
        a(f"v_add_u32 v{EA+3+j}, v12, v11")
    lg = LgTrack(a)
    def reads(gf):
        c, f = divmod(gf, 12)
        ks, t = divmod(f, 6)
        hi = 2 if c >= 5 else 0
        so = (c - 5 if c >= 5 else c) * CH3
        r = WB + (gf % 6) * 4
        return [(f"ds_read_b64_tr_b16 {v(r+2*rr,2)}, v{4+hi+(t&1)} offset:{so + (32*ks+8*rr)*192 + 64*(t>>1)}", gf) for rr in range(2)]
    D = 5
    st()
    a("s_barrier")
    st()
    for gf in range(D):
        for t_, tag in reads(gf): lg.issue(t_, tag)
    for gf in range(108):
        c, f = divmod(gf, 12)
        ks, t = divmod(f, 6)
        if f == 12 - D and c < 8:
            a("s_barrier"); st()
        if t == 0: vm.wait(2 * c + ks)
        lg.wait(gf)
        cc = "0" if gf < 6 else v(AB + 4 * t, 4)
        a(f"v_mfma_f32_16x16x32_bf16 {v(AB+4*t,4)}, {v(WB+(gf%6)*4,4)}, {v(OB+4*(2*c+ks),4)}, {cc}")
        if gf + D < 108:
            for t_, tag in reads(gf + D): lg.issue(t_, tag)
    st()
    for t in range(6):
        a(f"v_cvt_pk_bf16_f32 v{OB+2*t}, v{AB+4*t}, v{AB+4*t+1}")
        a(f"v_cvt_pk_bf16_f32 v{OB+2*t+1}, v{AB+4*t+2}, v{AB+4*t+3}")
        a(f"ds_write_b64 v8, {v(OB+2*t,2)} offset:{32*t}")
    for j in range(3): a(f"ds_read_b128 {v(OB+16+4*j,4)}, v{EA+j}")
    for j in range(3):
        a(f"s_waitcnt lgkmcnt({2-j})")
        a(f"buffer_store_dwordx4 {v(OB+16+4*j,4)}, v{EA+3+j}, s[44:47], s8 offen")
    st()
    if STAMP: a("s_waitcnt vmcnt(0)")
    st(); st.flush(15, 8)
    a("s_endpgm")
    a.label("K3_STAGE3")
    st.reset(2)
    a("s_cmp_ge_u32 s2, 256")
    a("s_cbranch_scc1 K3_END")
    a("s_sub_u32 s4, s2, 192")
    a("s_lshl_b32 s5, s15, 6")
    a("s_add_u32 s5, s5, s4")
    a("s_cmp_ge_u32 s5, 288")
    a("s_cbranch_scc1 K3_END")
    a("s_and_b32 s6, s4, 7")
    a("s_lshr_b32 s7, s5, 3")
    a("s_cmp_ge_u32 s5, 256")
    a("s_cselect_b32 s6, 8, s6")
    a("s_cselect_b32 s7, s4, s7")
    a("v_and_b32 v10, 7, v1")
    a("v_lshrrev_b32 v11, 3, v1")
    a("v_xor_b32 v12, v10, v11")
    a("v_lshlrev_b32 v2, 15, v11")
    a("v_lshl_add_u32 v2, v12, 4, v2")
    a("s_lshl_b32 s8, s6, 18")
    a("s_lshl_b32 s9, s7, 7")
    a("s_add_u32 s8, s8, s9")
    a(f"s_add_u32 s8, s8, {WS_Y}")
    a("s_lshl_b32 s9, s15, 13")
    a("v_lshl_add_u32 v3, v10, 3, v12")
    a("v_lshl_add_u32 v3, v3, 4, s9")
    a("s_lshl_b32 s10, s7, 3")
    a("v_add_u32 v4, s10, v11")
    a("v_mul_u32_u24 v4, 9216, v4")
    a("s_lshl_b32 s10, s6, 7")
    a("v_lshl_add_u32 v5, v10, 4, s10")
    a("v_lshl_add_u32 v6, v4, 1, v5")
    a("v_add_u32 v4, v4, v5")
    a("v_add_u32 v5, 4608, v4")
    a("s_waitcnt lgkmcnt(0)")
    srd(a, 40, P_WS, WS_END)
    srd(a, 44, P_OUT, 2048 * 2304)
    srd(a, 48, P_BQ, 2048 * 1152)
    for jj in range(8):
        a(f"s_add_u32 m0, s9, {1024*jj}")
        a(f"s_add_u32 s10, s8, {4096*jj}")
        a("buffer_load_dwordx4 v2, s[40:43], s10 offen lds")
    QB = 16; YB = QB + 32; YF = YB + 32; QF = YF + 64
    for r in range(8):
        a(f"buffer_load_dwordx4 {v(QB+4*r,4)}, v{4+(r>>2)}, s[48:51], 0 offen offset:{1152*(r&3)}")
    a("s_mov_b32 s11, 0xffff0000")
    st()
    a("s_waitcnt vmcnt(8)")
    for jj in range(8): a(f"ds_read_b128 {v(YB+4*jj,4)}, v3 offset:{1024*jj}")
    for jj in range(8):
        a(f"s_waitcnt lgkmcnt({7-jj})")
        for w in range(4):
            a(f"v_lshlrev_b32 v{YF+(2*w)*8+jj}, 16, v{YB+4*jj+w}")
            a(f"v_and_b32 v{YF+(2*w+1)*8+jj}, s11, v{YB+4*jj+w}")
    st()
    for r in range(8):
        a(f"s_waitcnt vmcnt(7)")
        q = QF + (r & 1) * 8
        for p in range(4):
            a(f"v_lshlrev_b32 v{q+2*p}, 16, v{QB+4*r+p}")
            a(f"v_and_b32 v{q+2*p+1}, s11, v{QB+4*r+p}")
        for p in range(4):
            a(f"v_pk_mul_f32 {v(q+2*p,2)}, {v(q+2*p,2)}, {v(YF+8*r+2*p,2)}")
        for p in range(4):
            a(f"v_cvt_pk_bf16_f32 v{QB+4*r+p}, v{q+2*p}, v{q+2*p+1}")
        a(f"s_movk_i32 s10, {1152 + 2304*r}")
        a(f"buffer_store_dwordx4 {v(QB+4*r,4)}, v6, s[44:47], s10 offen")
    st()
    if STAMP: a("s_waitcnt vmcnt(0)")
    st(); st.flush(15, 8)
    a.label("K3_END")
    a("s_endpgm")
    return a


def kred(specs):
    a = Asm()
    prologue(a)
    a("s_cmp_lg_u32 s2, 0")
    a("s_cbranch_scc1 KR_END")
    a("s_waitcnt lgkmcnt(0)")
    srd(a, 4, P_WS, 0x10000000)
    srd(a, 8, P_DBG, 256)
    a("v_mov_b32 v9, 0")
    for i, (kidx, first, n, stride, word, op) in enumerate(specs):
        a(f"v_mov_b32 v3, {'0' if op != 'min' else '-1'}")
        a(f"ds_write_b32 v9, v3")
        a(f"v_mul_u32_u24 v2, {128*stride}, v0")
        a(f"s_mov_b32 s12, {WS_ST + kidx*0x100000 + first*128}")
        for it in range((n + 63) // 64):
            cnt = min(64, n - it * 64)
            if cnt < 64:
                a(f"s_mov_b32 exec_lo, {hex(((1 << cnt) - 1) & 0xffffffff)}")
                a(f"s_mov_b32 exec_hi, {hex(((1 << cnt) - 1) >> 32)}")
            a(f"buffer_load_dword v4, v2, s[4:7], s12 offen offset:{4*word}")
            a(f"buffer_load_dword v5, v2, s[4:7], s12 offen offset:4")
            a("s_waitcnt vmcnt(0)")
            if op == "dmax": a("v_sub_u32 v4, v4, v5")
            if op == "davg":
                a("v_sub_u32 v4, v4, v5")
                a("v_add_u32 v3, v3, v4")
            else:
                a(f"v_{'min' if op == 'min' else 'max'}_u32 v3, v3, v4")
            a(f"s_add_u32 s12, s12, {64*128*stride}")
            a("s_mov_b64 exec, -1")
        a(f"ds_{'min_u32' if op == 'min' else 'add_u32' if op == 'davg' else 'max_u32'} v9, v3")
        a("ds_read_b32 v3, v9")
        a("s_waitcnt lgkmcnt(0)")
        if op == "davg":
            a("v_cvt_f32_u32 v3, v3")
            a(f"v_mul_f32 v3, {hex(f32bits(1.0/n))}, v3")
            a("v_cvt_u32_f32 v3, v3")
        a(f"buffer_store_dword v3, v9, s[8:11], 0 offen offset:{4*i}")
    a.label("KR_END")
    a("s_endpgm")
    return a

HEADER = open("concat_heads__sliding_block__ssm_conv_h3__prompt.s.ref").read().split("; Override")[0]

def build(path, kernels, verbose=False):
    head = HEADER; code = '.amdgcn_target "amdgcn-amd-amdhsa--gfx950"\n.text\n'; desc = '.section .rodata,"a"\n'
    for name, a, grid, block, lds in kernels:
        head += f"; @launch kernel={name} grid=({grid},1,1) block=({block},1,1) lds={lds}\n"
        c, d = kernel_text(name, a, verbose)
        code += c; desc += d
    open(path, "w").write(head + code + desc)

if __name__ == "__main__":
    ks = [("k1_kernel", k1(), 228, 512, NB1 * CH1), ("k2_kernel", k2(), 800, 256, LDS2), ("k3_kernel", k3(), 256, 512, LDS3)]
    if DBGST:
        specs = [(0, 0, 228, 8, 0, "min"), (0, 0, 228, 8, 16, "max"), (1, 0, 800, 4, 0, "min"), (1, 0, 800, 4, 16, "max"),
                 (2, 0, 256, 8, 0, "min"), (2, 0, 256, 8, 16, "max"),
                 (0, 0, 192, 8, 2, "davg"), (0, 0, 192, 8, 3, "davg"), (0, 0, 192, 8, 12, "davg"), (0, 0, 192, 8, 14, "davg"),
                 (1, 0, 288, 4, 4, "davg"), (1, 288*4, 512, 4, 4, "davg"), (1, 288*4, 512, 4, 8, "davg"),
                 (2, 0, 192, 8, 3, "davg"), (2, 0, 192, 8, 14, "davg"), (0, 192*8, 36, 8, 5, "davg")]
        ks.append(("kr_kernel", kred(specs), 1, 64, 64))
    build("out_dbg.s" if DBGST else "out_st.s" if STAMP else "out.s", ks, verbose="-v" in sys.argv)
```

```python
import sys, math, struct
sys.path.insert(0, "dev")
from asmlib import *

def f32bits(x): return struct.unpack("<I", struct.pack("<f", x))[0]

TSQ = 1152
TSKV = 2368
WS_Q = 0
WS_KV = 0x280000
WS_OM = 0x780000
WS_U = 0xA00000
WS_Y = 0xF00000
WS_END = 0x1200000
QSCALE = math.log2(math.e) / math.sqrt(18.0)

P_X, P_W, P_WO, P_BQ, P_BK, P_BV, P_SH, P_SK, P_SD, P_OUT, P_DBG, P_WS = [16 + 2 * i for i in range(12)]

def prologue(a):
    a("s_load_dwordx16 s[16:31], s[0:1], 0")
    a("s_load_dwordx8 s[32:39], s[0:1], 64")

def srd(a, d, p, nbytes, off=None):
    if off is None:
        a(f"s_mov_b32 s{d}, s{p}")
        a(f"s_mov_b32 s{d+1}, s{p+1}")
    else:
        a(f"s_add_u32 s{d}, s{p}, {off}")
        a(f"s_addc_u32 s{d+1}, s{p+1}, 0")
    a(f"s_mov_b32 s{d+2}, {nbytes}")
    a(f"s_mov_b32 s{d+3}, 0x00020000")

STAMP = "-stamp" in sys.argv or "-dbgst" in sys.argv
DBGST = "-dbgst" in sys.argv
WS_ST = 0x2000000
class Stamps:
    def __init__(self, a, kidx, base=64, mx=16): self.a = a; self.n = 0; self.kidx = kidx; self.base = base; self.mx = mx; self.dbgidx = (2, 3, 4)
    def reset(self, n): self.n = n
    def __call__(self, real=False):
        if not STAMP: return
        assert self.n < self.mx
        self.a(f"{'s_memrealtime' if real else 's_memtime'} s[{self.base+2*self.n}:{self.base+1+2*self.n}]"); self.n += 1
    def flush(self, wave_sgpr, nw):
        if not STAMP: return
        a = self.a
        a("s_memrealtime s[96:97]")
        a("s_mov_b64 exec, 1")
        a("s_waitcnt lgkmcnt(0)")
        srd(a, 4, P_WS, 0x10000000)
        a(f"s_mul_i32 s98, s2, {nw}")
        a(f"s_add_u32 s98, s98, s{wave_sgpr}")
        a("s_lshl_b32 s98, s98, 7")
        a(f"s_add_u32 s98, s98, {WS_ST + self.kidx * 0x100000}")
        a("v_mov_b32 v0, 0")
        for i in range(self.n):
            a(f"v_mov_b32 v1, s{self.base+2*i}")
            a(f"buffer_store_dword v1, v0, s[4:7], s98 offen offset:{4*i}")
        a("v_mov_b32 v1, s96")
        a("buffer_store_dword v1, v0, s[4:7], s98 offen offset:64")
        a(f"v_mov_b32 v1, {self.n}")
        a("buffer_store_dword v1, v0, s[4:7], s98 offen offset:68")
        a("s_getreg_b32 s99, hwreg(HW_REG_HW_ID)")
        a("v_mov_b32 v1, s99")
        a("buffer_store_dword v1, v0, s[4:7], s98 offen offset:72")
        a("s_getreg_b32 s99, hwreg(HW_REG_XCC_ID)")
        a("v_mov_b32 v1, s99")
        a("buffer_store_dword v1, v0, s[4:7], s98 offen offset:76")

class VmTrack:
    def __init__(self, a): self.a = a; self.q = []
    def issue(self, text, tag):
        self.a(text); self.q.append(tag)
    def wait(self, tag, extra=""):
        idx = [i for i, t in enumerate(self.q) if t == tag]
        if not idx:
            if extra: self.a(f"s_waitcnt {extra}")
            return
        n = len(self.q) - 1 - idx[-1]
        assert n <= 63, n
        self.a(f"s_waitcnt vmcnt({n}) {extra}")
        self.q = self.q[idx[-1] + 1:]


class LgTrack:
    def __init__(self, a): self.a = a; self.q = []
    def issue(self, text, tag):
        if len(self.q) >= 15: self.wait(self.q[0])
        self.a(text); self.q.append(tag)
    def wait(self, *tags):
        idx = [i for i, t in enumerate(self.q) if t in tags]
        if not idx: return
        n = len(self.q) - 1 - idx[-1]
        self.a(f"s_waitcnt lgkmcnt({n})")
        self.q = self.q[idx[-1] + 1:]
    def drain(self):
        if self.q: self.a("s_waitcnt lgkmcnt(0)")
        self.q = []


def swap23(x): return (x & ~12) | ((x & 4) << 1) | ((x & 8) >> 1)

def v_swap23(a, dst, src, tmp):
    a(f"v_and_b32 v{dst}, 3, v{src}")
    a(f"v_and_b32 v{tmp}, 4, v{src}")
    a(f"v_lshl_or_b32 v{dst}, v{tmp}, 1, v{dst}")
    a(f"v_and_b32 v{tmp}, 8, v{src}")
    a(f"v_lshrrev_b32 v{tmp}, 1, v{tmp}")
    a(f"v_or_b32 v{dst}, v{dst}, v{tmp}")

_pc = [0]
def code_ptr(a, sd, label):
    _pc[0] += 1
    L = f"LPC{_pc[0]}"
    a(f"s_getpc_b64 s[{sd}:{sd+1}]")
    a.label(L)
    a(f"s_add_u32 s{sd}, s{sd}, {label}-{L}")
    a(f"s_addc_u32 s{sd+1}, s{sd+1}, 0")

def opt(name, default):
    for x in sys.argv:
        if x.startswith(name + "="): return eval(x.split("=", 1)[1])
    return default
```

```python
from common import *
NB1 = 4
CW1 = 18432
CH1 = CW1 + 16384

def k1_loader(a, st):
    a("s_mul_i32 s8, s3, 4608")
    a("s_lshl_b32 s12, s3, 12")
    a(f"s_add_u32 s12, s12, {CW1}")
    a("s_mov_b32 s10, -1")
    a("s_mov_b32 s11, 0")
    a("s_lshl_b32 s14, s3, 4")
    for j in range(5):
        r = 4 + j
        a(f"v_add_u32 v16, {64*j}, v1")
        a("v_mul_u32_u24 v17, 57, v16")
        a("v_lshrrev_b32 v17, 10, v17")
        a("v_mul_u32_u24 v18, 18, v17")
        a("v_sub_u32 v18, v16, v18")
        a("v_and_b32 v19, 3, v17")
        a("v_and_b32 v20, 4, v17")
        a("v_lshl_or_b32 v19, v20, 1, v19")
        a("v_and_b32 v20, 8, v17")
        a("v_lshrrev_b32 v20, 1, v20")
        a("v_or_b32 v19, v19, v20")
        a("v_add_u32 v19, s14, v19")
        a("v_mul_u32_u24 v19, 3456, v19")
        a("v_lshl_add_u32 v19, v18, 4, v19")
        a(f"v_add_u32 v{r}, s7, v19")
        if 0 < j < 4: a(f"v_subrev_u32 v{r}, {1024*j}, v{r}")
    for u in range(288): assert (u * 57) >> 10 == u // 18, u
    a("v_lshrrev_b32 v16, 3, v1")
    a("v_lshrrev_b32 v17, 2, v16")
    a("v_lshlrev_b32 v17, 3, v17")
    a("v_and_b32 v18, 3, v16")
    a("v_add_u32 v17, v17, v18")
    a("s_lshl_b32 s14, s6, 5")
    a("v_add_u32 v17, s14, v17")
    a("v_mul_u32_u24 v17, 1152, v17")
    a("v_lshrrev_b32 v18, 4, v1")
    a("v_xor_b32 v18, v18, v1")
    a("v_and_b32 v18, 7, v18")
    a("v_xor_b32 v19, 4, v18")
    a("v_lshl_add_u32 v18, v18, 4, v17")
    a("v_lshl_add_u32 v19, v19, 4, v17")
    for j in range(4):
        srow = 16 * (j & 1) + 4 * (j >> 1)
        a(f"v_add_u32 v{9+j}, {srow*1152 - 1024*j}, v{18 + (j&1)}")
    a("s_mul_i32 s58, s56, 9")
    a("s_add_u32 s58, s58, 1")
    a("s_lshr_b32 s58, s58, 2")
    a("s_mul_i32 s59, s57, 3")
    a("s_add_u32 s59, s59, 1")
    a("s_lshr_b32 s59, s59, 1")
    a("s_add_u32 s58, s58, s59")
    a("s_sub_u32 s59, s58, 9")
    a("s_cmp_ge_u32 s58, 9")
    a("s_cselect_b32 s58, s59, s58")
    if not opt("rot1", 1): a("s_mov_b32 s58, 0")
    a("s_waitcnt lgkmcnt(0)")
    srd(a, 40, P_X, 2048 * 1152)
    srd(a, 44, P_W, 576 * 3456)
    vm = VmTrack(a)
    def issue(c):
        slot = c % NB1
        a(f"s_add_u32 m0, s12, {slot*CH1}")
        a("s_lshl_b32 s9, s58, 7")
        for j in range(4):
            vm.issue(f"buffer_load_dwordx4 v{9+j}, s[40:43], s9 offen offset:{j*1024} lds", c)
        a(f"s_add_u32 m0, s8, {slot*CH1}")
        a(f"s_mul_i32 s9, s58, {64*3456}")
        for j in range(4):
            vm.issue(f"buffer_load_dwordx4 v{4+j}, s[44:47], s9 offen offset:{j*1024} lds", c)
        a(f"s_add_u32 m0, s8, {slot*CH1+4096}")
        a("s_mov_b64 exec, s[10:11]")
        vm.issue(f"buffer_load_dwordx4 v8, s[44:47], s9 offen lds", c)
        a("s_mov_b64 exec, -1")
        a("s_add_u32 s58, s58, 1")
        a("s_cmp_eq_u32 s58, 9")
        a("s_cselect_b32 s58, 0, s58")
    st()
    issue(0); issue(1)
    st()
    for c in range(9):
        vm.wait(c); st(); a("s_barrier")
        if c + 2 < 9: issue(c + 2)
        if c == opt("pf1", 6):
            a("s_lshr_b32 s59, s2, 3")
            a("s_lshl_b32 s59, s59, 2")
            a("s_add_u32 s59, s59, s3")
            a("s_mul_i32 s59, s59, 24")
            a("v_add_u32 v16, s59, v1")
            a("s_and_b32 s59, s2, 7")
            a("s_lshl_b32 s60, s59, 11")
            a("s_lshl_b32 s61, s59, 8")
            a(f"s_add_u32 s61, s61, {16384 - 2048}")
            a("v_add_u32 v17, s60, v16")
            a("v_add_u32 v18, s61, v16")
            a("v_cmp_gt_u32 vcc, 2048, v16")
            a("v_cndmask_b32 v16, v18, v17, vcc")
            a("v_lshlrev_b32 v16, 7, v16")
            srd(a, 48, P_SK, 576 * 4096)
            a("s_mov_b32 exec_lo, 0xffffff")
            a("s_mov_b32 exec_hi, 0")
            vm.issue("buffer_load_dword v17, v16, s[48:51], 0 offen", "pf")
            code_ptr(a, 60, "k2_kernel")
            a("s_mov_b32 exec_lo, 0xffff")
            a("s_lshl_b32 s59, s3, 4")
            a("v_add_u32 v18, s59, v1")
            a("v_lshlrev_b32 v18, 7, v18")
            vm.issue("global_load_dword v19, v18, s[60:61]", "pf")
            a("s_mov_b64 exec, -1")
    st(); st.flush(15, 8)
    a("s_endpgm")

def k1_gemm(a, variant, st):
    XB = 16
    WB = XB + 16
    AB = WB + 36
    lg = LgTrack(a)
    def xreg(gk, F): return XB + ((gk & 1) * 2 + F) * 4
    def accr(t, F): return AB + (t * 2 + F) * 4
    def reads(gf):
        c, f = divmod(gf, 18)
        ks, t = divmod(f, 9)
        slot = c % NB1
        hi = 4 if slot >= 2 else 0
        so = (slot & 1) * CH1
        out = []
        if t == 0:
            for F in range(2):
                out.append((f"ds_read_b128 {v(xreg(c*2+ks,F),4)}, v{4+ks+hi} offset:{so + 2048*F}", gf))
        if variant == "qk":
            if t < 8: base, co = 2 + hi, 72 * (t >> 1) + 8 * (t & 1)
            else: base, co = 3 + hi, 32
        else:
            base, co = 2 + hi, 32 * t
        r = WB + (gf % 9) * 4
        for rr in range(2):
            out.append((f"ds_read_b64_tr_b16 {v(r+2*rr,2)}, v{base} offset:{so + (32*ks+8*rr)*288 + co}", gf))
        return out
    D = 6
    a("s_getpc_b64 s[58:59]")
    a("s_lshl_b32 s60, s3, 4")
    a("v_add_u32 v12, s60, v1")
    a("v_lshlrev_b32 v12, 7, v12")
    a("s_mov_b32 exec_lo, 0xffff")
    a("s_mov_b32 exec_hi, 0")
    a("global_load_dword v13, v12, s[58:59]")
    a("s_mov_b64 exec, -1")
    st()
    a("s_barrier")
    st()
    for gf in range(D):
        for t_, tag in reads(gf): lg.issue(t_, tag)
    for c in range(9):
        for f in range(18):
            gf = c * 18 + f
            ks, t = divmod(f, 9)
            if f == 18 - D and c < 8:
                a("s_barrier")
                st()
            lg.wait(gf)
            rd = reads(gf + D) if gf + D < 162 else []
            w = WB + (gf % 9) * 4
            half = (len(rd) + 1) // 2
            for F in range(2):
                cc = "0" if (c == 0 and ks == 0) else v(accr(t, F), 4)
                if variant == "qk":
                    a(f"v_mfma_f32_16x16x32_bf16 {v(accr(t,F),4)}, {v(w,4)}, {v(xreg(c*2+ks,F),4)}, {cc}")
                else:
                    a(f"v_mfma_f32_16x16x32_bf16 {v(accr(t,F),4)}, {v(xreg(c*2+ks,F),4)}, {v(w,4)}, {cc}")
                for t_, tag in (rd[:half] if F == 0 else rd[half:]): lg.issue(t_, tag)
    st()
    return AB, XB

def k1():
    a = Asm()
    st = Stamps(a, 0)
    st(real=True); st()
    prologue(a)
    a("v_and_b32 v1, 63, v0")
    a("v_lshrrev_b32 v13, 6, v0")
    a("v_readfirstlane_b32 s15, v13")
    a("s_cmp_ge_u32 s2, 192")
    a("s_cbranch_scc1 K1_STAGE1")
    a("s_and_b32 s3, s15, 3")
    a("s_and_b32 s12, s2, 7")
    a("s_lshr_b32 s13, s2, 3")
    a("s_and_b32 s56, s13, 3")
    a("s_lshr_b32 s57, s13, 2")
    a("s_lshr_b32 s14, s12, 1")
    a("s_lshl_b32 s14, s14, 2")
    a("s_add_u32 s14, s14, s56")
    a("s_lshl_b32 s6, s14, 2")
    a("s_add_u32 s6, s6, s3")
    a("s_and_b32 s14, s12, 1")
    a("s_mul_i32 s14, s14, 6")
    a("s_add_u32 s14, s14, s57")
    a("s_lshr_b32 s4, s14, 2")
    a("s_and_b32 s5, s14, 3")
    a("s_mul_i32 s7, s14, 288")
    a("s_cmp_lt_u32 s15, 4")
    a("s_cbranch_scc1 K1_COMP")
    k1_loader(a, st)
    a.label("K1_COMP")
    st.reset(2)
    a("v_and_b32 v14, 15, v1")
    a("v_lshrrev_b32 v15, 4, v1")
    a("v_lshrrev_b32 v16, 1, v14")
    a("v_xor_b32 v16, v16, v15")
    a("v_lshlrev_b32 v16, 4, v16")
    a("v_lshl_add_u32 v16, v14, 7, v16")
    a("s_lshl_b32 s12, s3, 12")
    a(f"s_add_u32 s12, s12, {CW1}")
    a("v_add_u32 v4, s12, v16")
    a("v_xor_b32 v5, 64, v4")
    a(f"v_add_u32 v8, {2*CH1}, v4")
    a(f"v_add_u32 v9, {2*CH1}, v5")
    a("v_lshrrev_b32 v16, 1, v15")
    a("v_lshlrev_b32 v16, 4, v16")
    a("v_and_b32 v17, 1, v15")
    a("v_lshl_add_u32 v16, v17, 2, v16")
    a("v_lshrrev_b32 v17, 2, v14")
    a("v_add_u32 v16, v16, v17")
    a("v_mul_u32_u24 v16, 288, v16")
    a("v_and_b32 v17, 3, v14")
    a("s_waitcnt lgkmcnt(0)")
    srd(a, 48, P_WS, WS_END)
    a("s_cmp_eq_u32 s4, 2")
    a("s_cbranch_scc1 K1_V")
    a("v_lshrrev_b32 v18, 1, v17")
    a("v_mul_u32_u24 v18, 40, v18")
    a("v_and_b32 v19, 1, v17")
    a("v_lshl_add_u32 v18, v19, 4, v18")
    a("v_add_u32 v2, v16, v18")
    a("v_mul_u32_u24 v18, 72, v17")
    a("v_add_u32 v3, v16, v18")
    a(f"v_add_u32 v6, {2*CH1}, v2")
    a(f"v_add_u32 v7, {2*CH1}, v3")
    a("s_cmp_eq_u32 s4, 0")
    a(f"s_movk_i32 s12, {TSKV}")
    a(f"s_cselect_b32 s12, {TSQ}, s12")
    a(f"s_cselect_b32 s13, {WS_Q}, {WS_KV}")
    a("s_lshl_b32 s9, s5, 9")
    a("s_add_u32 s9, s9, s6")
    a("s_mul_i32 s9, s9, s12")
    a("s_add_u32 s13, s13, s9")
    a("s_lshl_b32 s12, s12, 6")
    a("v_and_b32 v16, 7, v14")
    a("v_lshrrev_b32 v17, 3, v14")
    a("v_lshl_add_u32 v16, v17, 4, v16")
    a("v_lshrrev_b32 v17, 1, v15")
    a("v_mul_lo_u32 v17, v17, s12")
    a("v_and_b32 v18, 1, v15")
    a("v_lshl_add_u32 v17, v18, 9, v17")
    a("v_lshl_add_u32 v17, v16, 4, v17")
    a("v_add_u32 v10, s13, v17")
    a("v_lshlrev_b32 v17, 1, v15")
    a("v_mul_lo_u32 v17, v17, s12")
    a("v_lshl_add_u32 v17, v16, 2, v17")
    a("v_add_u32 v11, s13, v17")
    a("s_lshl_b32 s9, s12, 1")
    AB, XB = k1_gemm(a, "qk", st)
    def accr(t, F): return AB + (t * 2 + F) * 4
    a("s_cmp_lg_u32 s4, 0")
    a("s_cbranch_scc1 K1_NOSCALE")
    a(f"s_mov_b32 s10, {hex(f32bits(QSCALE))}")
    a("s_mov_b32 s11, s10")
    for i in range(36):
        a(f"v_pk_mul_f32 {v(AB+2*i,2)}, {v(AB+2*i,2)}, s[10:11]")
    a.label("K1_NOSCALE")
    a("s_mov_b32 s8, 0")
    T = XB
    for P in range(4):
        for F in range(2):
            r = T + (P * 2 + F) * 4
            for h in range(2):
                A = accr(2 * P + h, F)
                a(f"v_cvt_pk_bf16_f32 v{r+2*h}, v{A}, v{A+1}")
                a(f"v_cvt_pk_bf16_f32 v{r+2*h+1}, v{A+2}, v{A+3}")
            a(f"buffer_store_dwordx4 {v(r,4)}, v10, s[48:51], s8 offen offset:{128*F}")
        if P < 3: a("s_add_u32 s8, s8, s9")
    for F in range(2):
        r = T + 32 + 2 * F
        A = accr(8, F)
        a(f"v_cvt_pk_bf16_f32 v{r}, v{A}, v{A+1}")
        a(f"v_cvt_pk_bf16_f32 v{r+1}, v{A+2}, v{A+3}")
        a(f"buffer_store_dword v{r}, v11, s[48:51], 0 offen offset:{1024+32*F}")
        a(f"buffer_store_dword v{r+1}, v11, s[48:51], s12 offen offset:{1024+32*F}")
    st()
    if STAMP: a("s_waitcnt vmcnt(0)")
    st(); st.flush(15, 8)
    a("s_endpgm")
    a.label("K1_V")
    st.reset(2)
    a("v_lshl_add_u32 v2, v17, 3, v16")
    a(f"v_add_u32 v6, {2*CH1}, v2")
    a("s_lshl_b32 s9, s5, 9")
    a("s_add_u32 s9, s9, s6")
    a(f"s_mul_i32 s9, s9, {TSKV}")
    a(f"s_add_u32 s13, s9, {WS_KV + 1152}")
    a("v_and_b32 v16, 7, v1")
    a(f"s_mov_b32 s12, {64*TSKV}")
    a("v_mul_lo_u32 v16, v16, s12")
    a("v_lshrrev_b32 v17, 3, v1")
    a("v_mul_u32_u24 v17, 304, v17")
    a("v_add3_u32 v16, v16, v17, s13")
    for i in range(4): a(f"v_mov_b32 v{20+i}, 0x3f803f80")
    a("s_mov_b32 exec_hi, 0")
    a("buffer_store_dwordx4 v[20:23], v16, s[48:51], 0 offen offset:288")
    a("s_mov_b32 exec_hi, -1")
    a(f"s_mov_b32 s12, {64*TSKV - 288}")
    a("v_mul_u32_u24 v16, 304, v15")
    a("v_lshl_add_u32 v16, v14, 4, v16")
    a("v_add_u32 v16, s13, v16")
    EA = 16 + 16 + 36 + 72
    for t in range(9):
        a(f"v_add_u32 v17, {16*t}, v14")
        a("v_mul_u32_u24 v17, 57, v17")
        a("v_lshrrev_b32 v17, 10, v17")
        a("v_mul_lo_u32 v17, v17, s12")
        a(f"v_add_u32 v{EA+t}, v16, v17")
    AB, XB = k1_gemm(a, "v", st)
    assert AB + 72 == EA
    T = XB
    for t in range(9):
        r = T + t * 4
        for F in range(2):
            A = accr(t, F)
            a(f"v_cvt_pk_bf16_f32 v{r+2*F}, v{A}, v{A+1}")
            a(f"v_cvt_pk_bf16_f32 v{r+2*F+1}, v{A+2}, v{A+3}")
        a(f"buffer_store_dwordx4 {v(r,4)}, v{EA+t}, s[48:51], 0 offen offset:{256*t}")
    st()
    if STAMP: a("s_waitcnt vmcnt(0)")
    st(); st.flush(15, 8)
    a("s_endpgm")
    a.label("K1_STAGE1")
    st.reset(2)
    a("s_cmp_ge_u32 s2, 256")
    a("s_cbranch_scc1 K1_END")
    a("s_sub_u32 s4, s2, 192")
    a("s_lshl_b32 s5, s15, 6")
    a("s_add_u32 s5, s5, s4")
    a("s_cmp_ge_u32 s5, 288")
    a("s_cbranch_scc1 K1_END")
    a("s_and_b32 s6, s4, 7")
    a("s_lshr_b32 s7, s5, 3")
    a("s_cmp_ge_u32 s5, 256")
    a("s_cselect_b32 s6, 8, s6")
    a("s_cselect_b32 s5, s4, s7")
    a("v_and_b32 v10, 7, v1")
    a("v_lshrrev_b32 v11, 3, v1")
    a("s_lshl_b32 s7, s5, 3")
    a("v_add_u32 v3, s7, v11")
    a("s_lshl_b32 s8, s6, 3")
    a("v_add_u32 v2, s8, v10")
    a("v_mul_u32_u24 v5, 9216, v3")
    a("v_lshl_add_u32 v5, v2, 4, v5")
    a("v_subrev_u32 v4, 4608, v5")
    a("v_add_u32 v6, 4608, v5")
    a("v_lshlrev_b32 v7, 6, v2")
    a("v_xor_b32 v12, v10, v11")
    a("v_lshl_add_u32 v13, v10, 3, v12")
    a("s_lshl_b32 s9, s15, 12")
    a("v_lshl_add_u32 v13, v13, 4, s9")
    a("v_lshl_add_u32 v14, v1, 4, s9")
    a("v_add_u32 v8, s8, v11")
    a("v_lshlrev_b32 v8, 15, v8")
    a("v_add_u32 v9, s7, v12")
    a("v_lshlrev_b32 v9, 4, v9")
    a("v_sub_u32 v8, v8, v9")
    a(f"v_add_u32 v8, {WS_U + 4080}, v8")
    a("s_waitcnt lgkmcnt(0)")
    srd(a, 40, P_BK, 2048 * 1152)
    srd(a, 44, P_BV, 2048 * 1152)
    srd(a, 48, P_SH, 576 * 8)
    srd(a, 52, P_WS, WS_END)
    KB = 16; VB = KB + 44; SB = VB + 32; WF = SB + 16
    for r in range(11):
        rr = r + 1
        a(f"buffer_load_dwordx4 {v(KB+4*r,4)}, v{4+rr//4}, s[40:43], 0 offen offset:{1152*(rr%4)}")
    for r in range(8):
        rr = r + 4
        a(f"buffer_load_dwordx4 {v(VB+4*r,4)}, v{4+rr//4}, s[44:47], 0 offen offset:{1152*(rr%4)}")
    for j in range(4):
        a(f"buffer_load_dwordx4 {v(SB+4*j,4)}, v7, s[48:51], 0 offen offset:{16*j}")
    a("s_getpc_b64 s[58:59]")
    a("v_lshlrev_b32 v15, 7, v1")
    a("s_mov_b32 exec_hi, 0")
    a("global_load_dword v9, v15, s[58:59]")
    a("s_mov_b32 exec_hi, -1")
    a("s_mov_b32 s9, 0xffff0000")
    st()
    a("s_waitcnt vmcnt(1)")
    st()
    for j in range(8):
        p = j >> 1
        for tap in range(4):
            src = SB + 2 * j + (tap >> 1)
            dst = WF + (p * 4 + tap) * 2 + (j & 1)
            if tap & 1: a(f"v_and_b32 v{dst}, s9, v{src}")
            else: a(f"v_lshlrev_b32 v{dst}, 16, v{src}")
    KF = WF + 32; VF = KF + 22; UF = VF + 16; OB = UF + 16; RB = OB + 8
    def flush_stores(p):
        a("s_waitcnt lgkmcnt(0)")
        for e in range(2):
            a(f"s_mov_b32 s10, {(2*p+e)*4096}")
            a(f"buffer_store_dwordx4 {v(RB+e*4,4)}, v8, s[52:55], s10 offen")
    for p in range(4):
        for r in range(11):
            a(f"v_lshlrev_b32 v{KF+2*r}, 16, v{KB+4*r+p}")
            a(f"v_and_b32 v{KF+2*r+1}, s9, v{KB+4*r+p}")
        if p > 0: flush_stores(p - 1)
        for r in range(8):
            a(f"v_lshlrev_b32 v{VF+2*r}, 16, v{VB+4*r+p}")
            a(f"v_and_b32 v{VF+2*r+1}, s9, v{VB+4*r+p}")
        W = lambda tap: v(WF + (p * 4 + tap) * 2, 2)
        for r in range(8):
            a(f"v_pk_mul_f32 {v(UF+2*r,2)}, {v(KF+2*r,2)}, {W(3)}")
        for tap in (2, 1, 0):
            for r in range(8):
                a(f"v_pk_fma_f32 {v(UF+2*r,2)}, {v(KF+2*(r+3-tap),2)}, {W(tap)}, {v(UF+2*r,2)}")
        for r in range(8):
            a(f"v_pk_mul_f32 {v(UF+2*r,2)}, {v(UF+2*r,2)}, {v(VF+2*r,2)}")
        for e in range(2):
            o = OB + e * 4
            for dw in range(4):
                hi_r = 7 - 2 * dw
                a(f"v_cvt_pk_bf16_f32 v{o+dw}, v{UF+2*hi_r+e}, v{UF+2*(hi_r-1)+e}")
            a(f"ds_write_b128 v13, {v(o,4)} offset:{e*1024}")
        for q in range(2):
            a(f"ds_read_b128 {v(RB+q*4,4)}, v14 offset:{q*1024}")
    flush_stores(3)
    st()
    if opt("rb1", 1):
        a("s_lshl_b32 s10, s6, 18")
        a("s_lshl_b32 s11, s5, 7")
        a("s_sub_u32 s10, s10, s11")
        a(f"s_add_u32 s10, s10, {WS_U + 3968}")
        a("v_lshlrev_b32 v2, 12, v1")
        a("s_waitcnt vmcnt(0)")
        a("buffer_load_dword v3, v2, s[52:55], s10 offen sc1")
    if STAMP: a("s_waitcnt vmcnt(0)")
    st(); st.flush(15, 8)
    a.label("K1_END")
    a("s_endpgm")
    return a
```

```python
from common import *
SC2 = 4160; SV2 = 4576; UO2 = 4 * SC2; CHN2 = 4 * SC2 + 2 * SV2
LDS2 = 2 * CHN2

def k2_prefetch(a, tmpv, dstv):
    pass

def k2_conv(a, st):
    a("s_and_b32 s3, s15, 1")
    a("s_lshr_b32 s13, s15, 1")
    a("s_sub_u32 s14, s14, 60")
    a("s_and_b32 s12, s2, 7")
    a("s_lshl_b32 s40, s12, 5")
    a("s_add_u32 s40, s40, s14")
    a("s_lshl_b32 s41, s12, 2")
    a("s_add_u32 s41, s41, s14")
    a("s_add_u32 s41, s41, 224")
    a("s_cmp_lt_u32 s14, 32")
    a("s_cselect_b32 s46, s40, s41")
    a("s_lshl_b32 s12, s46, 1")
    a("s_add_u32 s12, s12, s13")
    a(f"s_mul_i32 s13, s13, {CHN2}")
    a("v_lshlrev_b32 v2, 4, v1")
    a("v_and_b32 v14, 15, v1")
    a("v_lshrrev_b32 v15, 4, v1")
    a(f"s_mul_i32 s14, s3, {SV2}")
    a("s_add_u32 s14, s14, s13")
    a(f"s_add_u32 s14, s14, {UO2}")
    a("s_lshl_b32 s40, s12, 12")
    a(f"s_sub_u32 s41, {576*4096}, s40")
    a("s_lshl_b32 s47, s3, 1")
    a("s_sub_u32 s47, s40, s47")
    a(f"s_add_u32 s47, s47, {WS_U + 2}")
    a(f"s_mul_i32 s43, s3, {2*SC2}")
    a("s_add_u32 s43, s43, s13")
    a("s_lshl_b32 s44, s3, 3")
    a("v_add_u32 v3, v14, v15")
    a("v_subrev_u32 v3, 15, v3")
    a("v_lshlrev_b32 v3, 2, v3")
    a("s_waitcnt lgkmcnt(0)")
    a(f"s_add_u32 s4, s{P_SK}, s40")
    a(f"s_addc_u32 s5, s{P_SK+1}, 0")
    a("s_mov_b32 s6, s41")
    a("s_mov_b32 s7, 0x00020000")
    srd(a, 8, P_WS, WS_END)
    a("s_lshl_b32 s41, s46, 2")
    a(f"s_load_dword s42, s[{P_SD}:{P_SD+1}], s41")
    a("buffer_load_dword v16, v3, s[4:7], 0 offen")
    for cc in range(2):
        a(f"s_add_u32 m0, s43, {cc*SC2 + 64}")
        a(f"s_add_u32 s45, s44, {4*cc + 4}")
        for j in range(4):
            a(f"buffer_load_dwordx4 v2, s[4:7], s45 offen offset:{1024*j} lds")
    a("s_mov_b32 m0, s14")
    for j in range(4):
        a(f"buffer_load_dwordx4 v2, s[8:11], s47 offen offset:{1024*j} lds")
    st()
    a(f"v_mul_u32_u24 v4, {SC2}, v15")
    a("v_lshl_add_u32 v4, v14, 2, v4")
    a("v_add_u32 v4, s13, v4")
    a("v_add_u32 v7, s14, v2")
    for i in range(4): a(f"v_mov_b32 v{20+i}, 0")
    a("s_mov_b32 exec_lo, 0x3fffffff")
    a("s_mov_b32 exec_hi, 0")
    a("ds_write_b128 v7, v[20:23] offset:4096")
    a("s_mov_b64 exec, -1")
    a("v_and_b32 v5, 3, v14")
    a(f"v_mul_u32_u24 v5, {SC2}, v5")
    a("v_lshrrev_b32 v6, 2, v14")
    a("v_add_u32 v6, v6, v15")
    a("v_lshl_add_u32 v5, v6, 4, v5")
    a("s_lshl_b32 s14, s3, 8")
    a("s_add_u32 s14, s14, s13")
    a("v_add_u32 v5, s14, v5")
    a("v_and_b32 v6, 1, v14")
    a(f"v_mul_u32_u24 v6, {SV2}, v6")
    a("v_lshrrev_b32 v8, 1, v14")
    a("v_lshlrev_b32 v8, 6, v8")
    a("v_sub_u32 v6, v6, v8")
    a("v_lshl_add_u32 v6, v15, 4, v6")
    a(f"s_add_u32 s14, s14, {UO2 + 448}")
    a("v_add_u32 v6, s14, v6")
    a("s_waitcnt vmcnt(12)")
    a("ds_write_b32 v4, v16")
    a("s_waitcnt vmcnt(0)")
    a("s_lshl_b32 s14, s3, 1")
    a("v_add_u32 v7, s14, v7")
    a("s_mov_b64 exec, 1")
    a("ds_write_b16 v7, v20 offset:4094")
    a("s_mov_b64 exec, -1")
    a("s_waitcnt lgkmcnt(0)")
    st()
    a("s_barrier")
    st()
    HB = 16; UB = HB + 32; AB = UB + 32
    lg = LgTrack(a)
    def rdH(it, c): lg.issue(f"ds_read_b128 {v(HB+4*c,4)}, v5 offset:{512*c + 64*it}", ("H", it, c))
    def rdU(it, d): lg.issue(f"ds_read_b128 {v(UB+4*d,4)}, v6 offset:{3584 - 512*d + 64*it}", ("U", it, d))
    rdH(0, 0)
    for d in range(7, -1, -1): rdU(0, d)
    for c in range(1, 6): rdH(0, c)
    pend = [("H", 0, 6), ("H", 0, 7)]
    for it in range(4):
        for c in range(8):
            js = list(range(7, c - 1, -1))
            for j in js:
                d = j - c
                lg.wait(("H", it, c), ("U", it, d))
                cc = "0" if (it == 0 and c == 0) else v(AB + 4 * j, 4)
                a(f"v_mfma_f32_16x16x32_bf16 {v(AB+4*j,4)}, {v(UB+4*d,4)}, {v(HB+4*c,4)}, {cc}")
                if it < 3:
                    if j == 7: pend.append(("U", it + 1, d))
                    if j == c: pend.append(("H", it + 1, c))
                if pend and len(lg.q) < 14:
                    k, i2, x = pend.pop(0)
                    (rdH if k == "H" else rdU)(i2, x)
        while pend and it < 3 and len(lg.q) < 14:
            k, i2, x = pend.pop(0)
            (rdH if k == "H" else rdU)(i2, x)
    st()
    a("s_barrier")
    a("s_lshl_b32 s14, s3, 12")
    a("s_add_u32 s14, s14, s13")
    a("v_add_u32 v7, s14, v2")
    a("s_xor_b32 s43, s3, 1")
    a("s_lshl_b32 s43, s43, 12")
    a("s_add_u32 s43, s43, s13")
    a("v_add_u32 v8, s43, v2")
    a("v_lshlrev_b32 v9, 7, v15")
    a("v_lshl_add_u32 v9, v14, 2, v9")
    a("s_lshl_b32 s43, s3, 11")
    a(f"s_add_u32 s44, s13, {UO2 + SV2 + 4092 - 1536 - 64}")
    a("s_sub_u32 s44, s44, s43")
    a("v_sub_u32 v10, s44, v9")
    a(f"s_add_u32 s44, s40, s43")
    a(f"s_add_u32 s44, s44, {WS_Y}")
    a("s_cmp_eq_u32 s3, 0")
    a("s_cbranch_scc1 K2C_P0")
    for jj in range(4): a(f"ds_write_b128 v7, {v(AB+4*jj,4)} offset:{1024*jj}")
    for i in range(8): a(f"v_pk_mov_b32 {v(AB+2*i,2)}, {v(AB+16+2*i,2)}, {v(AB+16+2*i,2)} op_sel:[0,1]")
    a("s_branch K2C_J")
    a.label("K2C_P0")
    for jj in range(4): a(f"ds_write_b128 v7, {v(AB+16+4*jj,4)} offset:{1024*jj}")
    a.label("K2C_J")
    for jj in range(4):
        for hi in range(2):
            a(f"ds_read_b32 v{UB+2*jj+hi}, v10 offset:{1536 - 512*jj + 64 - 64*hi}")
    a("s_waitcnt lgkmcnt(0)")
    a("s_barrier")
    for jj in range(4): a(f"ds_read_b128 {v(HB+4*jj,4)}, v8 offset:{1024*jj}")
    a("s_lshr_b32 s45, s15, 1")
    a("s_cmp_eq_u32 s45, 0")
    a("s_cselect_b32 s45, 16, 0")
    a("s_lshl_b32 s42, s42, s45")
    a("s_and_b32 s42, s42, 0xffff0000")
    a("s_mov_b32 s45, 0xffff0000")
    for jj in range(4):
        for hi in range(2):
            u = UB + 2 * jj + hi
            t = UB + 8 + 2 * (2 * jj + hi)
            a(f"v_and_b32 v{t}, s45, v{u}")
            a(f"v_lshlrev_b32 v{t+1}, 16, v{u}")
            a(f"v_fmac_f32 v{AB+4*jj+2*hi}, s42, v{t}")
            a(f"v_fmac_f32 v{AB+4*jj+2*hi+1}, s42, v{t+1}")
    a("s_waitcnt lgkmcnt(0)")
    for jj in range(4):
        for hi in range(2):
            r = AB + 4 * jj + 2 * hi
            a(f"v_pk_add_f32 {v(r,2)}, {v(r,2)}, {v(HB+4*jj+2*hi,2)}")
            a(f"v_cvt_pk_bf16_f32 v{UB+2*jj+hi}, v{r}, v{r+1}")
            a(f"buffer_store_dword v{UB+2*jj+hi}, v9, s[8:11], s44 offen offset:{512*jj + 64*hi}")
    st()
    if opt("pf2", 1):
        a("s_lshr_b32 s14, s2, 3")
        a("s_sub_u32 s14, s14, 60")
        a("s_lshl_b32 s14, s14, 2")
        a("s_add_u32 s14, s14, s15")
        a("s_mul_i32 s45, s14, 4608")
        a("v_lshlrev_b32 v2, 7, v1")
        srd(a, 4, P_WO, 576 * 1152)
        a("s_mov_b32 exec_hi, 0xf")
        a("buffer_load_dword v16, v2, s[4:7], s45 offen")
        srd(a, 4, P_BQ, 2048 * 1152)
        a("s_and_b32 s46, s2, 7")
        a("s_lshl_b32 s45, s46, 7")
        a("s_mul_i32 s43, s14, 18432")
        a("s_add_u32 s45, s45, s43")
        a("s_sub_u32 s43, s14, 128")
        a("s_lshr_b32 s43, s43, 2")
        a("s_lshl_b32 s43, s43, 3")
        a("s_add_u32 s43, s43, s46")
        a("s_lshl_b32 s43, s43, 2")
        a("s_add_u32 s43, s43, s15")
        a("s_mul_i32 s43, s43, 18432")
        a("s_add_u32 s43, s43, 1024")
        a("s_cmp_ge_u32 s14, 128")
        a("s_cselect_b32 s45, s43, s45")
        a("v_mul_u32_u24 v3, 1152, v1")
        a("s_mov_b32 exec_lo, 0xffff")
        a("s_mov_b32 exec_hi, 0")
        a("buffer_load_dword v17, v3, s[4:7], s45 offen")
        code_ptr(a, 46, "k3_kernel")
        a("s_lshl_b32 s45, s15, 11")
        a("v_add_u32 v4, s45, v2")
        a("global_load_dword v18, v4, s[46:47]")
        a("s_waitcnt vmcnt(3)")
        a("buffer_load_dword v19, v2, s[8:11], s44 offen sc1")
    if STAMP: a("s_waitcnt vmcnt(0)")
    st(); st.flush(15, 4)
    a("s_endpgm")

def k2_attn(a, st):
    MK = 40
    a("s_and_b32 s12, s2, 7")
    a("s_lshl_b32 s12, s12, 2")
    a("s_and_b32 s13, s14, 3")
    a("s_lshr_b32 s72, s14, 2")
    a("s_add_u32 s14, s12, s13")
    a("s_sub_u32 s12, 15, s72")
    a("s_lshl_b32 s12, s12, 2")
    a("s_add_u32 s3, s12, s15")
    a("s_sub_u32 s13, 7, s15")
    a("s_cmp_eq_u32 s72, 14")
    a("s_cselect_b32 s12, 0, s12")
    a("s_cselect_b32 s3, s13, s3")
    a("s_cselect_b32 s73, 1, 0")
    a(f"s_mov_b32 s13, {28672 - 1024}")
    a(f"s_cselect_b32 s13, {38912 - 1024}, s13")
    a("s_lshl_b32 s72, s15, 10")
    a("s_sub_u32 s13, s13, s72")
    a("s_mov_b32 s101, s12")
    a("s_sub_u32 s12, s12, 8")
    a(f"s_mul_i32 s12, s12, {TSKV}")
    a("s_add_u32 s12, s12, s13")
    a("v_lshlrev_b32 v2, 4, v1")
    a("v_add_u32 v7, s12, v2")
    a("v_and_b32 v8, 31, v1")
    a("v_lshlrev_b32 v3, 2, v8")
    a("s_lshl_b32 s12, s14, 6")
    a("s_add_u32 s12, s12, s3")
    a(f"s_mul_i32 s12, s12, {TSQ}")
    a(f"s_mul_i32 s72, s14, {64*TSKV}")
    a(f"s_add_u32 s72, s72, {WS_KV}")
    a("s_waitcnt lgkmcnt(0)")
    srd(a, 4, P_WS, 64 * TSKV, "s72")
    srd(a, 8, P_WS, WS_END)
    QM = 12; QT = 16; KA = 20; VA = 36; S = [52, 68, 84]; CBk = 100; O = 116
    B2, B3, B4 = 132, 133, 134
    a("s_mov_b32 m0, s13")
    a(f"buffer_load_dwordx4 {v(QM,4)}, v2, s[8:11], s12 offen")
    a(f"buffer_load_dword v{QT}, v3, s[8:11], s12 offen offset:1024")
    for j in range(7):
        a("buffer_load_dwordx4 v7, s[4:7], 0 offen lds")
        if j < 6:
            a("s_sub_u32 m0, m0, 4096")
            a("v_subrev_u32 v7, 4096, v7")
    st()
    a(f"v_mov_b32 v{B2}, v2")
    a(f"v_mov_b32 v{B3}, v3")
    v_swap23(a, 4, 8, 5)
    a("v_min_u32 v5, 18, v8")
    a("v_cmp_gt_u32 vcc, 16, v8")
    a("v_lshrrev_b32 v9, 5, v1")
    a("v_mul_u32_u24 v6, 304, v9")
    a("v_cndmask_b32 v4, v5, v4, vcc")
    a("v_lshl_add_u32 v4, v4, 4, v6")
    a(f"v_add_u32 v{B4}, 1152, v4")
    a("v_lshrrev_b32 v5, 4, v8")
    a("v_lshlrev_b32 v5, 14, v5")
    a("v_lshl_add_u32 v5, v9, 8, v5")
    a("v_and_b32 v6, 15, v8")
    a("v_lshl_add_u32 v5, v6, 4, v5")
    a("v_lshlrev_b32 v6, 2, v8")
    for r in range(16):
        m = 0
        for l in range(64):
            j = (r & 7) + 8 * (l >> 5) + 16 * (r >> 3)
            if j <= swap23(l & 31): m |= 1 << l
        a(f"s_mov_b32 s{MK+2*r}, {hex(m & 0xffffffff)}")
        a(f"s_mov_b32 s{MK+2*r+1}, {hex(m >> 32)}")
    for b in range(2):
        for i in (5, 6, 7): a(f"v_mov_b32 v{KA+8*b+i}, 0")
    for i in (1, 2, 3): a(f"v_mov_b32 v{QT+i}, 0")
    a("s_waitcnt vmcnt(0)")
    st()
    a("s_barrier")
    st()
    a.label("K2A_TASK")
    a("v_cmp_gt_u32 vcc, 32, v1")
    a("s_sub_u32 s13, s3, s101")
    a(f"s_mul_i32 s13, s13, {TSKV}")
    a(f"v_add_u32 v2, s13, v{B2}")
    a(f"v_add_u32 v3, s13, v{B3}")
    a(f"v_add_u32 v4, s13, v{B4}")
    a(f"v_cndmask_b32 v{QT}, 0, v{QT}, vcc")
    a("s_lshl_b32 s12, s3, 15")
    a("s_lshl_b32 s13, s14, 9")
    a("s_add_u32 s12, s12, s13")
    a(f"s_add_u32 s12, s12, {WS_OM}")
    a("s_lshl_b32 s13, s14, 13")
    a("s_lshl_b32 s72, s3, 7")
    a("s_add_u32 s13, s13, s72")
    a(f"s_add_u32 s13, s13, {WS_OT}")
    lg = LgTrack(a)
    kcount = [0]
    def rdK(t, tag):
        b = kcount[0] & 1; kcount[0] += 1
        lg.issue(f"ds_read_b128 {v(KA+8*b,4)}, v2 offset:{t*TSKV}", tag)
        lg.issue(f"ds_read_b32 v{KA+8*b+4}, v3 offset:{t*TSKV+1024}", tag)
        return b
    def qk(b, tag, D, C):
        lg.wait(tag)
        a(f"v_mfma_f32_32x32x16_bf16 {v(D,16)}, {v(KA+8*b,4)}, {v(QM,4)}, {C}")
        a(f"v_mfma_f32_32x32x16_bf16 {v(D,16)}, {v(KA+8*b+4,4)}, {v(QT,4)}, {v(D,16)}")
    MX = 10
    def maxes(R, first):
        for i in range(8):
            m = MX + (i & 1)
            if first and i < 2: a(f"v_max_f32 v{m}, v{R+2*i}, v{R+2*i+1}")
            else: a(f"v_max3_f32 v{m}, v{R+2*i}, v{R+2*i+1}, v{m}")
    def exit_if_done(n, label):
        a(f"s_cmp_le_u32 s3, {n}")
        a(f"s_cbranch_scc1 {label}")
    order = [8, 0, 7, 6, 5, 4, 3, 2, 1]
    bufs = {}
    bufs[0] = rdK(order[0], ("k1", 0)); bufs[1] = rdK(order[1], ("k1", 1))
    dst = lambda n: S[0] if n == 0 else S[1 + ((n - 1) & 1)]
    for n, t in enumerate(order):
        qk(bufs[n], ("k1", n), dst(n), "0")
        if n + 2 < 9: bufs[n + 2] = rdK(order[n + 2], ("k1", n + 2))
        if n == 2:
            a("s_cmp_ge_u32 s3, 8")
            a("s_cbranch_scc1 K2A_HASOLD")
            for r in range(16): a(f"v_mov_b32 v{S[1]+r}, 0xf149f2ca")
            a.label("K2A_HASOLD")
            for r in range(16):
                a(f"v_cndmask_b32 v{S[0]+r}, v{S[1]+r}, v{S[0]+r}, s[{MK+2*r}:{MK+2*r+1}]")
            maxes(S[0], True)
            exit_if_done(0, "K2A_P1X")
        elif n > 2:
            maxes(dst(n - 1), False)
            exit_if_done(n - 2, "K2A_P1X")
    maxes(dst(8), False)
    a.label("K2A_P1X")
    a("s_waitcnt lgkmcnt(0)")
    lg.q = []; kcount[0] = 0
    b2 = {}
    b2[7] = rdK(7, ("k2", 7)); b2[6] = rdK(6, ("k2", 6))
    def rdV(t, vb, tag):
        for hf in range(2):
            lg.issue(f"ds_read_b128 {v(VA+8*vb+4*hf,4)}, v4 offset:{t*TSKV + 608*hf}", tag)
    rdV(8, 0, ("v", 8)); rdV(0, 1, ("v", 0))
    a(f"v_max_f32 v{MX}, v{MX}, v{MX+1}")
    a(f"v_mov_b32 v{MX+1}, v{MX}")
    a(f"v_permlane32_swap_b32 v{MX}, v{MX+1}")
    a(f"v_max_f32 v{MX}, v{MX}, v{MX+1}")
    a(f"v_sub_f32 v{CBk}, 0, v{MX}")
    a(f"v_sub_f32 v{CBk+1}, 0, v{MX}")
    for i in range(1, 8): a(f"v_pk_mov_b32 {v(CBk+2*i,2)}, {v(CBk,2)}, {v(CBk,2)} op_sel:[0,1]")
    st()
    qk(b2[7], ("k2", 7), S[1], v(CBk, 16))
    b2[5] = rdK(5, ("k2", 5))
    for i in range(8): a(f"v_pk_add_f32 {v(S[0]+2*i,2)}, {v(S[0]+2*i,2)}, {v(CBk,2)}")
    for r in range(16): a(f"v_exp_f32 v{S[0]+r}, v{S[0]+r}")
    for r in range(16): a(f"v_cndmask_b32 v{S[2]+r}, 0, v{S[0]+r}, s[{MK+2*r}:{MK+2*r+1}]")
    for i in range(8): a(f"v_cvt_pk_bf16_f32 v{S[0]+i}, v{S[0]+2*i}, v{S[0]+2*i+1}")
    for i in range(8): a(f"v_cvt_pk_bf16_f32 v{S[2]+i}, v{S[2]+2*i}, v{S[2]+2*i+1}")
    for i in range(8): a(f"v_xor_b32 v{S[0]+i}, v{S[0]+i}, v{S[2]+i}")
    def pv(P, vb, tag, first=False):
        lg.wait(tag)
        for hf in range(2):
            C = "0" if (first and hf == 0) else v(O, 16)
            a(f"v_mfma_f32_32x32x16_bf16 {v(O,16)}, {v(VA+8*vb+4*hf,4)}, {v(P+4*hf,4)}, {C}")
    pv(S[2], 0, ("v", 8), True)
    lg.wait(("v", 0))
    rdV(7, 0, ("v", 7))
    a("s_cmp_lt_u32 s3, 8")
    a("s_cbranch_scc1 K2A_NOOLD")
    pv(S[0], 1, ("v", 0))
    a.label("K2A_NOOLD")
    rdV(6, 1, ("v", 6))
    exit_if_done(0, "K2A_P2X")
    for n, t in enumerate(range(7, 0, -1)):
        cur = S[t & 1]; nxt = S[(t + 1) & 1]
        if t > 1:
            qk(b2[t - 1], ("k2", t - 1), nxt, v(CBk, 16))
            if t - 3 >= 1: b2[t - 3] = rdK(t - 3, ("k2", t - 3))
        for r in range(16): a(f"v_exp_f32 v{cur+r}, v{cur+r}")
        for i in range(8): a(f"v_cvt_pk_bf16_f32 v{cur+i}, v{cur+2*i}, v{cur+2*i+1}")
        pv(cur, n & 1, ("v", t))
        if t - 2 >= 1: rdV(t - 2, n & 1, ("v", t - 2))
        if t > 1: exit_if_done(n + 1, "K2A_P2X")
    a.label("K2A_P2X")
    st()
    a(f"v_rcp_f32 v{MX}, v{O+10}")
    for i in range(5): a(f"v_pk_mul_f32 {v(O+2*i,2)}, {v(O+2*i,2)}, {v(MX,2)} op_sel_hi:[1,0]")
    for i in range(5): a(f"v_cvt_pk_bf16_f32 v{CBk+i}, v{O+2*i}, v{O+2*i+1}")
    a(f"buffer_store_dwordx4 {v(CBk,4)}, v5, s[8:11], s12 offen")
    a("s_mov_b32 exec_hi, 0")
    a(f"buffer_store_dword v{CBk+4}, v6, s[8:11], s13 offen")
    a("s_cmp_eq_u32 s73, 0")
    a("s_cbranch_scc1 K2A_DONE")
    a("s_mov_b32 exec_hi, -1")
    a("s_mov_b32 s73, 0")
    a("s_mov_b32 s3, s15")
    a("s_lshl_b32 s12, s14, 6")
    a("s_add_u32 s12, s12, s3")
    a(f"s_mul_i32 s12, s12, {TSQ}")
    a("s_nop 7")
    a(f"buffer_load_dwordx4 {v(QM,4)}, v{B2}, s[8:11], s12 offen")
    a(f"buffer_load_dword v{QT}, v{B3}, s[8:11], s12 offen offset:1024")
    a("s_waitcnt vmcnt(0) lgkmcnt(0)")
    a("s_branch K2A_TASK")
    a.label("K2A_DONE")
    st()
    if STAMP: a("s_waitcnt vmcnt(0)")
    st(); st.flush(15, 4)
    a("s_endpgm")

def k2():
    a = Asm()
    st = Stamps(a, 1, base=74, mx=11)
    st(real=True); st()
    prologue(a)
    a("v_and_b32 v1, 63, v0")
    a("v_lshrrev_b32 v13, 6, v0")
    a("v_readfirstlane_b32 s15, v13")
    a("s_lshr_b32 s14, s2, 3")
    a("s_cmp_ge_u32 s14, 60")
    a("s_cbranch_scc1 K2_CONV")
    k2_attn(a, st)
    a.label("K2_CONV")
    st.reset(2)
    a("s_cmp_ge_u32 s2, 768")
    a("s_cbranch_scc1 K2_END")
    k2_conv(a, st)
    a.label("K2_END")
    a("s_endpgm")
    return a
```

```python
from common import *
CH3 = 12288; EP3 = 9 * CH3; RS3 = 208; LDS3 = EP3 + 4 * 16 * RS3

def k3():
    a = Asm()
    st = Stamps(a, 2)
    st(real=True); st()
    prologue(a)
    a("v_and_b32 v1, 63, v0")
    a("v_lshrrev_b32 v13, 6, v0")
    a("v_readfirstlane_b32 s15, v13")
    a("s_cmp_ge_u32 s2, 192")
    a("s_cbranch_scc1 K3_STAGE3")
    a("s_and_b32 s3, s15, 3")
    a("s_and_b32 s12, s2, 7")
    a("s_lshr_b32 s13, s2, 3")
    a("s_and_b32 s14, s13, 3")
    a("s_lshl_b32 s12, s12, 2")
    a("s_add_u32 s12, s12, s14")
    a("s_lshr_b32 s13, s13, 2")
    a("s_mul_i32 s13, s13, 192")
    a("s_cmp_lt_u32 s15, 4")
    a("s_cbranch_scc1 K3_COMP")
    for u in range(192): assert (u * 171) >> 11 == u // 12
    a("s_mul_i32 s8, s3, 18")
    a("s_lshl_b32 s9, s3, 3")
    for j in range(3):
        a(f"v_add_u32 v16, {64*j}, v1")
        a("v_mul_u32_u24 v17, 171, v16")
        a("v_lshrrev_b32 v17, 11, v17")
        a("v_mul_u32_u24 v18, 12, v17")
        a("v_sub_u32 v18, v16, v18")
        a("v_and_b32 v20, 4, v17")
        a("v_lshrrev_b32 v19, 1, v20")
        a("v_xor_b32 v18, v18, v19")
        a("v_and_b32 v19, 3, v17")
        a("v_lshl_or_b32 v19, v20, 1, v19")
        a("v_and_b32 v20, 8, v17")
        a("v_lshrrev_b32 v20, 1, v20")
        a("v_or_b32 v19, v19, v20")
        a("v_lshlrev_b32 v18, 4, v18")
        a("v_add_u32 v18, s13, v18")
        a("v_add_u32 v20, s8, v19")
        a("v_mul_u32_u24 v20, 1152, v20")
        a(f"v_add_u32 v{2+j}, v20, v18")
        a("v_lshrrev_b32 v20, 1, v19")
        a("v_add_u32 v20, s9, v20")
        a("v_mul_u32_u24 v20, 18, v20")
        a("v_and_b32 v19, 1, v19")
        a("v_add3_u32 v20, v20, v19, 16")
        a("v_mul_u32_u24 v20, 1152, v20")
        a(f"v_add_u32 v{5+j}, v20, v18")
        if j:
            a(f"v_subrev_u32 v{2+j}, {1024*j}, v{2+j}")
            a(f"v_subrev_u32 v{5+j}, {1024*j}, v{5+j}")
    a("s_mul_i32 s8, s3, 3072")
    a("s_waitcnt lgkmcnt(0)")
    srd(a, 40, P_WO, 576 * 1152)
    vm = VmTrack(a)
    st()
    def issue(c):
        a(f"s_add_u32 m0, s8, {c*CH3}")
        a(f"s_mov_b32 s9, {c*72*1152 if c < 8 else 0}")
        for j in range(3):
            vm.issue(f"buffer_load_dwordx4 v{(2 if c < 8 else 5)+j}, s[40:43], s9 offen offset:{1024*j} lds", c)
    LA = 3
    for c in range(LA): issue(c)
    for c in range(9):
        vm.wait(c); st(); a("s_barrier")
        if c + LA < 9: issue(c + LA)
    st.flush(15, 8)
    a("s_endpgm")
    a.label("K3_COMP")
    st.reset(2)
    a("v_and_b32 v14, 15, v1")
    a("v_lshrrev_b32 v15, 4, v1")
    a("v_lshlrev_b32 v2, 4, v1")
    a("v_lshlrev_b32 v3, 15, v15")
    a("v_lshl_add_u32 v3, v14, 2, v3")
    a("s_lshl_b32 s4, s12, 2")
    a("s_add_u32 s4, s4, s3")
    a("s_lshl_b32 s5, s4, 14")
    a(f"s_add_u32 s5, s5, {WS_OM}")
    a("s_lshl_b32 s6, s4, 6")
    a(f"s_add_u32 s6, s6, {WS_OT}")
    a("s_waitcnt lgkmcnt(0)")
    srd(a, 40, P_WS, WS_END)
    srd(a, 44, P_OUT, 2048 * 2304)
    OB = 16; WB = OB + 72; AB = WB + 24
    vm = VmTrack(a)
    for ks in range(16):
        vm.issue(f"buffer_load_dwordx4 {v(OB+4*ks,4)}, v2, s[40:43], s5 offen offset:{1024*(ks&3)}", ks)
        if ks & 3 == 3: a("s_add_u32 s5, s5, 4096")
    for z in range(2):
        for e in range(4):
            a(f"s_add_u32 s7, s6, {(16*z+e)*8192}")
            vm.issue(f"buffer_load_dword v{OB+64+4*z+e}, v3, s[40:43], s7 offen", 16 + z)
    a("v_lshrrev_b32 v4, 1, v15")
    a("v_lshlrev_b32 v4, 4, v4")
    a("v_and_b32 v5, 1, v15")
    a("v_lshl_add_u32 v4, v5, 2, v4")
    a("v_lshrrev_b32 v6, 2, v14")
    a("v_add_u32 v4, v4, v6")
    a("v_mul_u32_u24 v4, 192, v4")
    a("v_and_b32 v6, 3, v14")
    a("v_lshl_add_u32 v4, v6, 3, v4")
    a("v_lshl_add_u32 v4, v5, 5, v4")
    a("v_xor_b32 v5, 32, v4")
    a(f"v_add_u32 v6, {5*CH3}, v4")
    a(f"v_add_u32 v7, {5*CH3}, v5")
    a("v_and_b32 v8, 3, v14")
    a("v_and_b32 v9, 4, v14")
    a("v_lshl_or_b32 v8, v9, 1, v8")
    a("v_and_b32 v9, 8, v14")
    a("v_lshrrev_b32 v9, 1, v9")
    a("v_or_b32 v8, v8, v9")
    a(f"v_mul_u32_u24 v8, {RS3}, v8")
    a("v_lshl_add_u32 v8, v15, 3, v8")
    a(f"s_mul_i32 s7, s3, {16*RS3}")
    a(f"s_add_u32 s7, s7, {EP3}")
    a("v_add_u32 v8, s7, v8")
    EA = AB + 24
    a("s_mul_i32 s8, s4, 36864")
    a("s_add_u32 s8, s8, s13")
    for j in range(3):
        a(f"v_add_u32 v9, {64*j}, v1")
        a("v_mul_u32_u24 v10, 171, v9")
        a("v_lshrrev_b32 v10, 11, v10")
        a("v_mul_u32_u24 v11, 12, v10")
        a("v_sub_u32 v11, v9, v11")
        a("v_lshlrev_b32 v11, 4, v11")
        a(f"v_mul_u32_u24 v12, {RS3}, v10")
        a(f"v_add3_u32 v{EA+j}, v12, v11, s7")
        a("v_mul_u32_u24 v12, 2304, v10")
        a(f"v_add_u32 v{EA+3+j}, v12, v11")
    lg = LgTrack(a)
    def reads(gf):
        c, f = divmod(gf, 12)
        ks, t = divmod(f, 6)
        hi = 2 if c >= 5 else 0
        so = (c - 5 if c >= 5 else c) * CH3
        r = WB + (gf % 6) * 4
        return [(f"ds_read_b64_tr_b16 {v(r+2*rr,2)}, v{4+hi+(t&1)} offset:{so + (32*ks+8*rr)*192 + 64*(t>>1)}", gf) for rr in range(2)]
    D = 5
    st()
    a("s_barrier")
    st()
    for gf in range(D):
        for t_, tag in reads(gf): lg.issue(t_, tag)
    for gf in range(108):
        c, f = divmod(gf, 12)
        ks, t = divmod(f, 6)
        if f == 12 - D and c < 8:
            a("s_barrier"); st()
        if t == 0: vm.wait(2 * c + ks)
        lg.wait(gf)
        cc = "0" if gf < 6 else v(AB + 4 * t, 4)
        a(f"v_mfma_f32_16x16x32_bf16 {v(AB+4*t,4)}, {v(WB+(gf%6)*4,4)}, {v(OB+4*(2*c+ks),4)}, {cc}")
        if gf + D < 108:
            for t_, tag in reads(gf + D): lg.issue(t_, tag)
    st()
    for t in range(6):
        a(f"v_cvt_pk_bf16_f32 v{OB+2*t}, v{AB+4*t}, v{AB+4*t+1}")
        a(f"v_cvt_pk_bf16_f32 v{OB+2*t+1}, v{AB+4*t+2}, v{AB+4*t+3}")
        a(f"ds_write_b64 v8, {v(OB+2*t,2)} offset:{32*t}")
    for j in range(3): a(f"ds_read_b128 {v(OB+16+4*j,4)}, v{EA+j}")
    for j in range(3):
        a(f"s_waitcnt lgkmcnt({2-j})")
        a(f"buffer_store_dwordx4 {v(OB+16+4*j,4)}, v{EA+3+j}, s[44:47], s8 offen")
    st()
    if STAMP: a("s_waitcnt vmcnt(0)")
    st(); st.flush(15, 8)
    a("s_endpgm")
    a.label("K3_STAGE3")
    st.reset(2)
    a("s_cmp_ge_u32 s2, 256")
    a("s_cbranch_scc1 K3_END")
    a("s_sub_u32 s4, s2, 192")
    a("s_lshl_b32 s5, s15, 6")
    a("s_add_u32 s5, s5, s4")
    a("s_cmp_ge_u32 s5, 288")
    a("s_cbranch_scc1 K3_END")
    a("s_and_b32 s6, s4, 7")
    a("s_lshr_b32 s7, s5, 3")
    a("s_cmp_ge_u32 s5, 256")
    a("s_cselect_b32 s6, 8, s6")
    a("s_cselect_b32 s7, s4, s7")
    a("v_and_b32 v10, 7, v1")
    a("v_lshrrev_b32 v11, 3, v1")
    a("v_xor_b32 v12, v10, v11")
    a("v_lshlrev_b32 v2, 15, v11")
    a("v_lshl_add_u32 v2, v12, 4, v2")
    a("s_lshl_b32 s8, s6, 18")
    a("s_lshl_b32 s9, s7, 7")
    a("s_add_u32 s8, s8, s9")
    a(f"s_add_u32 s8, s8, {WS_Y}")
    a("s_lshl_b32 s9, s15, 13")
    a("v_lshl_add_u32 v3, v10, 3, v12")
    a("v_lshl_add_u32 v3, v3, 4, s9")
    a("s_lshl_b32 s10, s7, 3")
    a("v_add_u32 v4, s10, v11")
    a("v_mul_u32_u24 v4, 9216, v4")
    a("s_lshl_b32 s10, s6, 7")
    a("v_lshl_add_u32 v5, v10, 4, s10")
    a("v_lshl_add_u32 v6, v4, 1, v5")
    a("v_add_u32 v4, v4, v5")
    a("v_add_u32 v5, 4608, v4")
    a("s_waitcnt lgkmcnt(0)")
    srd(a, 40, P_WS, WS_END)
    srd(a, 44, P_OUT, 2048 * 2304)
    srd(a, 48, P_BQ, 2048 * 1152)
    for jj in range(8):
        a(f"s_add_u32 m0, s9, {1024*jj}")
        a(f"s_add_u32 s10, s8, {4096*jj}")
        a("buffer_load_dwordx4 v2, s[40:43], s10 offen lds")
    QB = 16; YB = QB + 32; YF = YB + 32; QF = YF + 64
    for r in range(8):
        a(f"buffer_load_dwordx4 {v(QB+4*r,4)}, v{4+(r>>2)}, s[48:51], 0 offen offset:{1152*(r&3)}")
    a("s_mov_b32 s11, 0xffff0000")
    st()
    a("s_waitcnt vmcnt(8)")
    for jj in range(8): a(f"ds_read_b128 {v(YB+4*jj,4)}, v3 offset:{1024*jj}")
    for jj in range(8):
        a(f"s_waitcnt lgkmcnt({7-jj})")
        for w in range(4):
            a(f"v_lshlrev_b32 v{YF+(2*w)*8+jj}, 16, v{YB+4*jj+w}")
            a(f"v_and_b32 v{YF+(2*w+1)*8+jj}, s11, v{YB+4*jj+w}")
    st()
    for r in range(8):
        a(f"s_waitcnt vmcnt(7)")
        q = QF + (r & 1) * 8
        for p in range(4):
            a(f"v_lshlrev_b32 v{q+2*p}, 16, v{QB+4*r+p}")
            a(f"v_and_b32 v{q+2*p+1}, s11, v{QB+4*r+p}")
        for p in range(4):
            a(f"v_pk_mul_f32 {v(q+2*p,2)}, {v(q+2*p,2)}, {v(YF+8*r+2*p,2)}")
        for p in range(4):
            a(f"v_cvt_pk_bf16_f32 v{QB+4*r+p}, v{q+2*p}, v{q+2*p+1}")
        a(f"s_movk_i32 s10, {1152 + 2304*r}")
        a(f"buffer_store_dwordx4 {v(QB+4*r,4)}, v6, s[44:47], s10 offen")
    st()
    if STAMP: a("s_waitcnt vmcnt(0)")
    st(); st.flush(15, 8)
    a.label("K3_END")
    a("s_endpgm")
    return a
```

```python
import sys
sys.path.insert(0, 'dev')
from common import *
from k1 import *
from k2 import *
from k3 import *

def kred(specs, spin=None):
    a = Asm()
    prologue(a)
    a("s_cmp_lg_u32 s2, 0")
    a("s_cbranch_scc1 KR_END")
    a("s_waitcnt lgkmcnt(0)")
    srd(a, 4, P_WS, 0x10000000)
    srd(a, 8, P_DBG, 256)
    a("v_mov_b32 v9, 0")
    for i, (kidx, first, n, stride, word, op) in enumerate(specs):
        a(f"v_mov_b32 v3, {'0' if op != 'min' else '-1'}")
        a(f"ds_write_b32 v9, v3")
        a(f"v_mul_u32_u24 v2, {128*stride}, v0")
        a(f"s_mov_b32 s12, {WS_ST + kidx*0x100000 + first*128}")
        for it in range((n + 63) // 64):
            cnt = min(64, n - it * 64)
            if cnt < 64:
                a(f"s_mov_b32 exec_lo, {hex(((1 << cnt) - 1) & 0xffffffff)}")
                a(f"s_mov_b32 exec_hi, {hex(((1 << cnt) - 1) >> 32)}")
            a(f"buffer_load_dword v4, v2, s[4:7], s12 offen offset:{4*word}")
            a(f"buffer_load_dword v5, v2, s[4:7], s12 offen offset:4")
            a("s_waitcnt vmcnt(0)")
            if op == "dmax": a("v_sub_u32 v4, v4, v5")
            if op == "davg":
                a("v_sub_u32 v4, v4, v5")
                a("v_add_u32 v3, v3, v4")
            else:
                a(f"v_{'min' if op == 'min' else 'max'}_u32 v3, v3, v4")
            a(f"s_add_u32 s12, s12, {64*128*stride}")
            a("s_mov_b64 exec, -1")
        a(f"ds_{'min_u32' if op == 'min' else 'add_u32' if op == 'davg' else 'max_u32'} v9, v3")
        a("ds_read_b32 v3, v9")
        a("s_waitcnt lgkmcnt(0)")
        if op == "davg":
            a("v_cvt_f32_u32 v3, v3")
            a(f"v_mul_f32 v3, {hex(f32bits(1.0/n))}, v3")
            a("v_cvt_u32_f32 v3, v3")
        a(f"buffer_store_dword v3, v9, s[8:11], 0 offen offset:{4*i}")
        a(f"v_readfirstlane_b32 s{40+i}, v3")
    if spin is not None:
        hi, lo, mul, shr = spin
        if lo is None: a(f"s_mov_b32 s60, s{40+hi}")
        else: a(f"s_sub_u32 s60, s{40+hi}, s{40+lo}")
        a(f"s_mul_i32 s60, s60, {mul}")
        a(f"s_lshr_b32 s60, s60, {shr}")
        a("s_min_u32 s60, s60, 100000")
        a("s_memrealtime s[62:63]")
        a("s_waitcnt lgkmcnt(0)")
        a.label("KR_SPIN")
        a("s_memrealtime s[64:65]")
        a("s_waitcnt lgkmcnt(0)")
        a("s_sub_u32 s66, s64, s62")
        a("s_cmp_lt_u32 s66, s60")
        a("s_cbranch_scc1 KR_SPIN")
    a.label("KR_END")
    a("s_endpgm")
    return a

HEADER = open("concat_heads__sliding_block__ssm_conv_h3__prompt.s.ref").read().split("; Override")[0]

def build(path, kernels, verbose=False):
    head = HEADER; code = '.amdgcn_target "amdgcn-amd-amdhsa--gfx950"\n.text\n'; desc = '.section .rodata,"a"\n'
    for name, a, grid, block, lds in kernels:
        head += f"; @launch kernel={name} grid=({grid},1,1) block=({block},1,1) lds={lds}\n"
        c, d = kernel_text(name, a, verbose)
        code += c; desc += d
    code += '.p2align 8\n.fill 2304, 4, 0xbf810000\n'
    open(path, "w").write(head + code + desc)

if __name__ == "__main__":
    ks = [("k1_kernel", k1(), 256, 512, NB1 * CH1), ("k2_kernel", k2(), 768, 256, LDS2), ("k3_kernel", k3(), 256, 512, LDS3)]
    if DBGST:
        specs = [(0, 0, 228, 8, 0, "min"), (0, 0, 228, 8, 16, "max"), (1, 0, 800, 4, 0, "min"), (1, 0, 800, 4, 16, "max"),
                 (2, 0, 256, 8, 0, "min"), (2, 0, 256, 8, 16, "max"),
                 (0, 0, 192, 8, 2, "davg"), (0, 0, 192, 8, 3, "davg"), (0, 0, 192, 8, 12, "davg"), (0, 0, 192, 8, 14, "davg"),
                 (1, 0, 288, 4, 4, "davg"), (1, 288*4, 512, 4, 4, "davg"), (1, 288*4, 512, 4, 8, "davg"),
                 (2, 0, 192, 8, 3, "davg"), (2, 0, 192, 8, 14, "davg"), (0, 192*8, 36, 8, 5, "davg")]
        spins = eval(sys.argv[sys.argv.index("-dbgst") + 1])
        for i, sp in enumerate(spins):
            build(f"sp{i}.s", ks + [("kr_kernel", kred(specs, sp), 1, 64, 64)])
        sys.exit(0)
    build("out_dbg.s" if DBGST else "out_st.s" if STAMP else "out.s", ks, verbose="-v" in sys.argv)
```

```python
import sys, math
sys.path.insert(0, "dev")
from common import *

NAME = "concat_heads__sliding_block__ssm_conv_h3__prompt"
W_QM = 0x000000; W_QT = 0x200000; W_KT = 0x240000; W_K = 0x280000; W_V = 0x480000
W_OM = 0x700000; W_OT = 0x900000; W_U = 0xA00000; W_Y = 0xD00000
W_FQ = 0x1000000; W_FU = W_FQ + 0x8000; W_FY = W_FQ + 0x20000; W_FO = W_FQ + 0x60000
W_END = W_FQ + 0xA0000
NB1 = 4; CW1 = 18432; CH1 = CW1 + 16384
A_K = 0; A_V = 16384; A_KT = 34816; A_QM = 38912; A_QT = 47104; L_W2 = 0; L_A = 163840 - 49152
SC2 = 4224; SV2 = 4576; UO2 = 2 * SC2; XO2 = UO2 + 2 * SV2; CHN2 = XO2 + 8192
CBASE = CH1 - CHN2
PADO = SC2 + 4160
L_SYNC = CBASE + CHN2 + 4160
L_ARR = 112640
LDS_ALL = 163840
assert CBASE + 3 * CHN2 <= 3 * CH1 and L_A >= 9 * 12288
WSR = "s[40:43]"; TAG = "s[56:57]"
SPIN = 200000
LOC = opt("loc", 0)
V2 = opt("v2", 0)
DYN = opt("dyn", 0)
EP = opt("ep", 9)
GT = opt("gate_t", 6)
WALL = opt("wall", 1)
WT = opt("wtouch", 2)
KM = opt("km", 0)
KB0 = opt("kb0", 2)
SC1 = "sc1"
_lab = [0]
def lab(p):
    _lab[0] += 1
    return f"{p}{_lab[0]}"

import re as _re
class Ren:
    def __init__(self, a, voff, smap): self.a = a; self.voff = voff; self.smap = smap
    def _r(self, t):
        def fv(m):
            if m.group(2) is not None:
                lo, hi = int(m.group(2)), int(m.group(3))
                return f"v[{lo+self.voff}:{hi+self.voff}]"
            n = int(m.group(1))
            return f"v{n+self.voff}" if 2 <= n < 200 else m.group(0)
        def fs(m):
            if m.group(2) is not None:
                lo, hi = int(m.group(2)), int(m.group(3))
                if lo in self.smap:
                    assert self.smap[hi] - self.smap[lo] == hi - lo
                    return f"s[{self.smap[lo]}:{self.smap[hi]}]"
                return m.group(0)
            n = int(m.group(1))
            return f"s{self.smap.get(n, n)}"
        t = _re.sub(r"(?<![\w])v(?:(\d+)|\[(\d+):(\d+)\])(?![\w])", fv, t)
        t = _re.sub(r"(?<![\w])s(?:(\d+)|\[(\d+):(\d+)\])(?![\w])", fs, t)
        return t
    def __call__(self, t): self.a(self._r(t))
    def label(self, n): self.a.label(n)

class St:
    def __init__(self, a): self.a = a
    def __call__(self, i):
        if opt("jit", 0) and i not in (0, 31):
            a = self.a; L = lab("JT"); E = lab("JE")
            a("s_memtime s[96:97]")
            a("s_waitcnt lgkmcnt(0)")
            a("s_mul_i32 s96, s96, 0x9e3779b1")
            a("s_lshr_b32 s97, s96, 29")
            a("s_cmp_lg_u32 s97, 0")
            a(f"s_cbranch_scc1 {E}")
            a(f"s_bfe_u32 s96, s96, {hex((opt('jit', 0) << 16) | 12)}")
            a.label(L)
            a("s_sleep 4")
            a("s_sub_u32 s96, s96, 1")
            a("s_cmp_gt_i32 s96, 0")
            a(f"s_cbranch_scc1 {L}")
            a.label(E)
            return
        if not STAMP: return
        if opt("lite", 0) and i not in (0, 1, 31) + tuple(opt("keep", ())): return
        a = self.a
        if i == 0:
            a("s_memrealtime s[98:99]")
            return
        a("s_memrealtime s[96:97]")
        a("s_waitcnt lgkmcnt(0)")
        if i == 1 and not getattr(self, "d0", False): a("v_writelane_b32 v255, s98, 0")
        a(f"v_writelane_b32 v255, s96, {i}")
        if i < 15 and not opt("lite", 0):
            a("s_memtime s[96:97]")
            a("s_waitcnt lgkmcnt(0)")
            a(f"v_writelane_b32 v255, s96, {i+16}")
    def flush(self):
        if not STAMP: return
        a = self.a
        a("s_waitcnt vmcnt(0)")
        self(31)
        a("s_mov_b32 exec_lo, -1")
        a("s_mov_b32 exec_hi, 0")
        srd(a, 44, P_WS, 0x10000000)
        a("s_lshl_b32 s4, s2, 3")
        a("s_add_u32 s4, s4, s15")
        a("s_lshl_b32 s4, s4, 7")
        a(f"s_add_u32 s4, s4, {WS_ST}")
        a("v_lshlrev_b32 v2, 2, v1")
        a("buffer_store_dword v255, v2, s[44:47], s4 offen")

def poll_flags(a, vaddr, vt, lo, hi, slp=0):
    L = lab("PL"); D = lab("PD")
    a(f"s_mov_b32 exec_lo, {lo}")
    a(f"s_mov_b32 exec_hi, {hi}")
    a("s_mov_b32 s58, 0")
    a.label(L)
    a(f"buffer_load_dwordx2 {v(vt,2)}, v{vaddr}, {WSR}, 0 offen sc1")
    a("s_add_u32 s58, s58, 1")
    a("s_waitcnt vmcnt(0)")
    a(f"v_cmp_ne_u64 vcc, {TAG}, {v(vt,2)}")
    a("s_nop 4")
    a(f"s_cbranch_vccz {D}")
    slp = max(slp, opt("psl", 0))
    if slp: a(f"s_sleep {slp}")
    a(f"s_cmp_lt_u32 s58, {SPIN}")
    a(f"s_cbranch_scc1 {L}")
    a.label(D)
    a("s_mov_b64 exec, -1")

def set_flag(a, soff, vt):
    a(f"v_mov_b32 v{vt}, s56")
    a(f"v_mov_b32 v{vt+1}, s57")
    a(f"v_mov_b32 v{vt+2}, 0")
    a("s_mov_b64 exec, 1")
    a(f"buffer_store_dwordx2 {v(vt,2)}, v{vt+2}, {WSR}, {soff} offen sc1")
    a("s_mov_b64 exec, -1")

def get_tag(a, vt):
    L = lab("GT"); D = lab("GD")
    srd(a, 52, P_DBG, 256)
    a(f"v_mov_b32 v{vt+2}, 0")
    a("s_mov_b32 s58, 0")
    a.label(L)
    a(f"buffer_load_dwordx2 {v(vt,2)}, v{vt+2}, s[52:55], 0 offen sc1")
    a("s_add_u32 s58, s58, 1")
    a("s_waitcnt vmcnt(0)")
    a(f"v_readfirstlane_b32 s56, v{vt}")
    a(f"v_readfirstlane_b32 s57, v{vt+1}")
    a("s_cmp_lg_u64 s[56:57], 0")
    a(f"s_cbranch_scc1 {D}")
    a(f"s_cmp_lt_u32 s58, {SPIN}")
    a(f"s_cbranch_scc1 {L}")
    a.label(D)

def lds_wait(a, vaddr, off, vt):
    L = lab("LW"); D = lab("LD")
    a("s_mov_b32 s58, 0")
    a.label(L)
    a(f"ds_read_b32 v{vt}, v{vaddr} offset:{off}")
    a("s_add_u32 s58, s58, 1")
    a("s_waitcnt lgkmcnt(0)")
    a(f"v_readfirstlane_b32 s59, v{vt}")
    a("s_cmp_eq_u32 s59, s56")
    a(f"s_cbranch_scc1 {D}")
    if opt("lsl", 0): a(f"s_sleep {opt('lsl', 0)}")
    a(f"s_cmp_lt_u32 s58, {SPIN*16}")
    a(f"s_cbranch_scc1 {L}")
    a.label(D)

def arr_wait(a, mask, va, vt, slp=0, off=0):
    L = lab("AW"); D = lab("AD")
    a(f"s_mov_b64 exec, {mask}")
    a("s_mov_b32 s58, 0")
    a.label(L)
    a(f"ds_read_b32 v{vt}, v{va} offset:{off}")
    a("s_add_u32 s58, s58, 1")
    a("s_waitcnt lgkmcnt(0)")
    a(f"v_cmp_ne_u32 vcc, s56, v{vt}")
    a("s_nop 4")
    a(f"s_cbranch_vccz {D}")
    if slp: a(f"s_sleep {slp}")
    if opt("lsl", 0): a(f"s_sleep {opt('lsl', 0)}")
    a(f"s_cmp_lt_u32 s58, {SPIN*16}")
    a(f"s_cbranch_scc1 {L}")
    a.label(D)
    a("s_mov_b64 exec, -1")

def tag_from(a, vt):
    D = lab("TF")
    a(f"v_readfirstlane_b32 s56, v{vt}")
    a(f"v_readfirstlane_b32 s57, v{vt+1}")
    a("s_cmp_lg_u64 s[56:57], 0")
    a(f"s_cbranch_scc1 {D}")
    get_tag(a, vt)
    a.label(D)

def line_addr(a, vid, vx, vw, t):
    a("s_and_b32 s58, s2, 6")
    a("s_lshl_b32 s58, s58, 8")
    a(f"v_add_u32 v{vx}, s58, v{vid}")
    a(f"v_mul_u32_u24 v{vx}, 1152, v{vx}")
    a(f"v_subrev_u32 v{vw}, 512, v{vid}")
    a(f"v_and_b32 v{vw}, 0x3ff, v{vw}")
    a(f"v_mul_u32_u24 v{t}, 4682, v{vw}")
    a(f"v_lshrrev_b32 v{t}, 16, v{t}")
    for u in range(1024): assert (u * 4682) >> 16 == u // 14
    a(f"v_mul_u32_u24 v{t}, 13, v{t}")
    a("s_and_b32 s58, s2, 1")
    a("s_mul_i32 s58, s58, 13")
    a(f"v_add3_u32 v{vw}, v{vw}, v{t}, s58")
    a(f"v_lshlrev_b32 v{vw}, 7, v{vw}")

def g_loader(a, st):
    a("s_mul_i32 s8, s3, 4608")
    a("s_lshl_b32 s12, s3, 12")
    a(f"s_add_u32 s12, s12, {CW1}")
    a("s_mov_b32 s10, -1")
    a("s_mov_b32 s11, 0")
    a("v_lshrrev_b32 v16, 3, v1")
    a("v_lshrrev_b32 v17, 2, v16")
    a("v_lshlrev_b32 v17, 3, v17")
    a("v_and_b32 v18, 3, v16")
    a("v_add_u32 v17, v17, v18")
    a("s_lshl_b32 s14, s6, 5")
    a("v_add_u32 v17, s14, v17")
    a("v_mul_u32_u24 v17, 1152, v17")
    a("v_lshrrev_b32 v18, 4, v1")
    a("v_xor_b32 v18, v18, v1")
    a("v_and_b32 v18, 7, v18")
    a("v_xor_b32 v19, 4, v18")
    a("v_lshl_add_u32 v18, v18, 4, v17")
    a("v_lshl_add_u32 v19, v19, 4, v17")
    for j in range(4):
        srow = 16 * (j & 1) + 4 * (j >> 1)
        a(f"v_add_u32 v{9+j}, {srow*1152 - 1024*j}, v{18 + (j&1)}")
    rm = opt("rotm", 0)
    if KM:
        a("s_mov_b32 s62, 0")
        a("s_lshr_b32 s59, s2, 3")
        a("s_lshl_b32 s59, s59, 2")
        a("s_add_u32 s59, s59, s3")
        a("v_and_b32 v20, 15, v1")
        a("v_lshl_add_u32 v20, s59, 4, v20")
        line_addr(a, 20, 21, 22, 23)
        a("v_lshrrev_b32 v23, 4, v1")
        a("s_cmp_lt_u32 s59, 32")
        a("s_cselect_b64 vcc, -1, 0")
        a(f"s_mov_b32 s58, {64*3456}")
        a("s_cselect_b32 s58, 128, s58")
        a("v_cndmask_b32 v21, v22, v21, vcc")
        a("v_mul_lo_u32 v23, v23, s58")
        a("v_add_u32 v21, v21, v23")
    elif LOC:
        a("s_mul_i32 s62, s4, 3")
        a("s_add_u32 s62, s62, s60")
        a("s_sub_u32 s63, s62, 9")
        a("s_cmp_ge_u32 s62, 9")
        a("s_cselect_b32 s62, s63, s62")
    elif rm == 0:
        a("s_mul_i32 s62, s60, 9")
        a("s_add_u32 s62, s62, 1")
        a("s_lshr_b32 s62, s62, 2")
        a("s_mul_i32 s63, s61, 3")
        a("s_add_u32 s63, s63, 1")
        a("s_lshr_b32 s63, s63, 1")
        a("s_add_u32 s62, s62, s63")
        a("s_sub_u32 s63, s62, 9")
        a("s_cmp_ge_u32 s62, 9")
        a("s_cselect_b32 s62, s63, s62")
    else:
        if rm == 1: tab = [3 * (((j & 3) + (j >> 2)) % 3) for j in range(24)]
        elif rm == 2: tab = [([0, 2, 4, 7][j & 3] + [0, 4, 0, 4, 0, 4][j >> 2]) % 9 for j in range(24)]
        elif rm == 3: tab = [([0, 2, 4, 7][j & 3] + [0, 3, 6, 0, 3, 6][j >> 2]) % 9 for j in range(24)]
        elif rm == 4: tab = [([0, 3, 6, 1][j & 3] + [0, 3, 6, 1, 4, 7][j >> 2]) % 9 for j in range(24)]
        elif rm == 6: tab = [([0, 2, 4, 7][j & 3] + [0, 2, 4, 7, 6, 1][j >> 2]) % 9 for j in range(24)]
        elif rm == 5: tab = [[0, 4][((j & 3) + (j >> 2)) % 2] for j in range(24)]
        w = [sum(tab[8 * k + i] << (4 * i) for i in range(8)) for k in range(3)]
        a("s_lshr_b32 s63, s2, 6")
        a(f"s_mov_b32 s62, {hex(w[0])}")
        a("s_cmp_eq_u32 s63, 1")
        a(f"s_cselect_b32 s62, {hex(w[1])}, s62")
        a("s_cmp_eq_u32 s63, 2")
        a(f"s_cselect_b32 s62, {hex(w[2])}, s62")
        a("s_bfe_u32 s63, s2, 0x30003")
        a("s_lshl_b32 s63, s63, 2")
        a("s_lshr_b32 s62, s62, s63")
        a("s_and_b32 s62, s62, 15")
    a("s_waitcnt lgkmcnt(0)")
    srd(a, 44, P_X, 2048 * 1152)
    srd(a, 48, P_W, 576 * 3456)
    srd(a, 40, P_WS, W_END)
    if opt("etp", 0): publish_tag(a, 4)
    if opt("qd", 0):
        a("s_cmp_lg_u32 s4, 0")
        a("s_cbranch_scc1 GL_NOQD")
        get_tag(a, 236)
        a.label("GL_NOQD")
    vm = VmTrack(a)
    def nxt(r):
        a(f"s_add_u32 {r}, {r}, 1")
        a(f"s_cmp_eq_u32 {r}, 9")
        a(f"s_cselect_b32 {r}, 0, {r}")
    def issue_x(c):
        slot = c % NB1
        a(f"s_add_u32 m0, s12, {slot*CH1}")
        a("s_lshl_b32 s9, s63, 7")
        for j in range(4):
            vm.issue(f"buffer_load_dwordx4 v{9+j}, s[44:47], s9 offen offset:{j*1024} lds", c)
        nxt("s63")
    def issue_w(c):
        slot = c % NB1
        a(f"s_add_u32 m0, s8, {slot*CH1}")
        a(f"s_mul_i32 s9, s62, {64*3456}")
        for j in range(4):
            vm.issue(f"buffer_load_dwordx4 v{4+j}, s[48:51], s9 offen offset:{j*1024} lds", c)
        a(f"s_add_u32 m0, s8, {slot*CH1+4096}")
        a("s_mov_b64 exec, s[10:11]")
        vm.issue(f"buffer_load_dwordx4 v8, s[48:51], s9 offen lds", c)
        a("s_mov_b64 exec, -1")
        nxt("s62")
    def issue(c): issue_x(c); issue_w(c)
    a("s_mov_b32 s63, s62")
    if opt("lp", 0): a(f"s_setprio {opt('lp', 0)}")
    st(1)
    if KM:
        a("s_cmp_lt_u32 s59, 32")
        a("s_cselect_b32 s52, s44, s48")
        a("s_cselect_b32 s53, s45, s49")
        a("s_cselect_b32 s54, s46, s50")
        a("s_cmp_lt_u32 s59, 88")
        a("s_cselect_b32 s54, s54, 0")
        a("s_mov_b32 s55, 0x00020000")
        m = (1 << (16 * KB0)) - 1
        a(f"s_mov_b32 exec_lo, {hex(m & 0xffffffff)}")
        a(f"s_mov_b32 exec_hi, {hex(m >> 32)}")
        vm.issue("buffer_load_dword v252, v21, s[52:55], 0 offen", "t")
        a("s_mov_b64 exec, -1")
    issue_x(0)
    a("s_lshl_b32 s14, s3, 4")
    for j in range(5):
        r = 4 + j
        a(f"v_add_u32 v16, {64*j}, v1")
        a("v_mul_u32_u24 v17, 57, v16")
        a("v_lshrrev_b32 v17, 10, v17")
        a("v_mul_u32_u24 v18, 18, v17")
        a("v_sub_u32 v18, v16, v18")
        v_swap23(a, 19, 17, 20)
        a("v_add_u32 v19, s14, v19")
        a("v_mul_u32_u24 v19, 3456, v19")
        a("v_lshl_add_u32 v19, v18, 4, v19")
        a(f"v_add_u32 v{r}, s7, v19")
        if 0 < j < 4: a(f"v_subrev_u32 v{r}, {1024*j}, v{r}")
    issue_w(0)
    if opt("mt", 0) and not opt("rotm", 0):
        a("s_mul_i32 s58, s61, 3")
        a("s_add_u32 s58, s58, 13")
        a("s_lshr_b32 s58, s58, 1")
        a("s_sub_u32 s59, s58, 9")
        a("s_cmp_ge_u32 s58, 9")
        a("s_cselect_b32 s58, s59, s58")
        a("s_lshl_b32 s58, s58, 2")
        a("s_add_u32 s58, s58, s60")
        a("s_lshl_b32 s58, s58, 2")
        a("s_add_u32 s58, s58, s3")
        a(f"s_mul_i32 s58, s58, {4*3456}")
        a("s_and_b32 s59, s7, 0xffffff80")
        a("s_add_u32 s58, s58, s59")
        a("v_and_b32 v16, 3, v1")
        a("v_mul_u32_u24 v16, 3456, v16")
        a("v_lshrrev_b32 v17, 2, v1")
        a("v_lshl_add_u32 v16, v17, 7, v16")
        a("s_mov_b64 exec, 0xfff")
        vm.issue("buffer_load_dword v252, v16, s[48:51], s58 offen", "mt")
        a("s_mov_b64 exec, -1")
    issue(1)
    tab_load(a, lambda t: vm.issue(t, "tab"))
    rc = Ren(a, 116, CSM)
    for c in range(8):
        vm.wait(c); a("s_barrier")
        if c == 0: st(2)
        if c + 2 < 9: issue(c + 2)
        if c == 3:
            srd(a, 52, P_DBG, 256)
            a("v_mov_b32 v238, 0")
            vm.issue("buffer_load_dwordx2 v[236:237], v238, s[52:55], 0 offen sc1", "tag")
        if c == 5:
            a("s_lshr_b32 s29, s3, 1")
            a("s_lshl_b32 s28, s2, 1")
            a("s_add_u32 s28, s28, s29")
            a("s_add_u32 s28, s28, 192")
            a("s_add_u32 s29, s29, 1")
            cv_flagaddr(rc)
            a("s_lshl_b32 s14, s3, 10")
        if c == EP:
            a("s_mov_b64 exec, 0xff")
            vm.issue(f"buffer_load_dwordx2 v[20:21], v120, {WSR}, s14 offen sc1", "p1")
            a("s_mov_b64 exec, -1")
        if c == opt("lc", 6) and LOC == 2:
            a("v_lshlrev_b32 v16, 7, v1")
            a("v_add_u32 v17, 8192, v16")
            a("v_lshrrev_b32 v18, 3, v1")
            a("v_lshlrev_b32 v18, 16, v18")
            a("v_and_b32 v19, 7, v1")
            a("v_lshl_add_u32 v18, v19, 7, v18")
            a("v_lshrrev_b32 v19, 1, v1")
            a("v_lshlrev_b32 v19, 14, v19")
            a("v_and_b32 v20, 1, v1")
            a("v_lshl_add_u32 v19, v20, 7, v19")
            a("s_lshl_b32 s9, s5, 9")
            a("s_add_u32 s9, s9, s6")
            a("s_lshl_b32 s9, s9, 10")
            a("s_lshl_b32 s13, s5, 8")
            a("s_add_u32 s13, s13, s6")
            a("s_lshl_b32 s13, s13, 8")
            a("s_cmp_eq_u32 s4, 0")
            a(f"s_cselect_b32 s58, {W_QM}, {W_K}")
            a(f"s_mov_b32 s59, {W_KT}")
            a(f"s_cselect_b32 s59, {W_QT}, s59")
            a("s_add_u32 s9, s9, s58")
            a("s_add_u32 s13, s13, s59")
            a("s_lshl_b32 s58, s5, 6")
            a("s_add_u32 s58, s58, s6")
            a("s_mul_i32 s58, s58, 9216")
            a(f"s_add_u32 s58, s58, {W_V}")
            a("s_cmp_eq_u32 s4, 2")
            a("s_cselect_b64 vcc, -1, 0")
            a("s_cselect_b32 s9, s58, s9")
            a("s_cselect_b32 s13, s58, s13")
            a("v_cndmask_b32 v16, v18, v16, vcc")
            a("v_cndmask_b32 v17, v19, v17, vcc")
            vm.issue(f"buffer_load_dword v252, v16, {WSR}, s9 offen sc1", "pf")
            a("s_mov_b64 exec, 0xff")
            vm.issue(f"buffer_load_dword v252, v17, {WSR}, s13 offen sc1", "pf")
            a("s_mov_b64 exec, -1")
        if c == opt("tc", 6):
            a("v_lshlrev_b32 v16, 7, v1")
            srd(a, 44, P_SK, 576 * 4096)
            a("s_lshl_b32 s9, s2, 13")
            a("s_lshl_b32 s13, s3, 11")
            a("s_add_u32 s9, s9, s13")
            a("s_add_u32 s9, s9, 0xC0000")
            a("s_mov_b64 exec, 0xffff")
            vm.issue("buffer_load_dword v252, v16, s[44:47], s9 offen", "pf")
            a("s_mov_b64 exec, -1")
        if c == 6:
            tag_from(a, 236)
            cv_usetup(rc)
            cv_hsetup(rc)
    a("s_mov_b32 s10, 2")
    if opt("lp", 0): a("s_setprio 0")
    if EP > 7:
        vm.wait(8); a("s_barrier")
        st(3)
        a("s_branch MC_H")
        return
    a(f"v_lshl_add_u32 v17, v1, 2, {0}")
    a(f"v_add_u32 v17, {L_SYNC + 48}, v17")
    a("v_lshl_add_u32 v18, s3, 2, v17")
    vm.wait(8); vm.wait("p1")
    a("s_mov_b64 exec, 0xff")
    a(f"v_cmp_ne_u64 vcc, {TAG}, v[20:21]")
    a("s_mov_b64 exec, 1")
    a("s_nop 0")
    a("s_cmp_eq_u64 vcc, 0")
    a("s_cselect_b32 s9, s56, 0")
    a("v_mov_b32 v19, s9")
    a("ds_write_b32 v18, v19")
    a("s_mov_b64 exec, 15")
    a("s_waitcnt lgkmcnt(0)")
    a("s_barrier")
    a("ds_read_b32 v19, v17")
    a("s_mov_b64 exec, -1")
    st(3)
    if opt("cw", 0):
        a("v_subrev_u32 v17, 16, v17")
        arr_wait(a, 15, 17, 22, slp=1)
    cv_hload(rc)
    a("s_mov_b64 exec, 15")
    a("s_waitcnt lgkmcnt(0)")
    a("v_cmp_ne_u32 vcc, s56, v19")
    a("s_mov_b64 exec, -1")
    a("s_nop 3")
    a("s_cbranch_vccz MC_W")
    a("s_branch MC_H2")

def g_gemm(a, variant, st):
    XB = 16; WB = XB + 16; AB = WB + 36
    lg = LgTrack(a)
    TMAJ = opt("tmaj", 1)
    T = 148
    def xreg(gk, F): return 140 + F * 4 if (gk == 17 and TMAJ) else XB + ((gk & 1) * 2 + F) * 4
    def accr(t, F): return AB + (t * 2 + F) * 4
    def kt(c, f): return (f & 1, f >> 1) if (c == 8 and TMAJ) else divmod(f, 9)
    def reads(gf):
        c, f = divmod(gf, 18)
        ks, t = kt(c, f)
        slot = c % NB1
        hi = 4 if slot >= 2 else 0
        so = (slot & 1) * CH1
        out = []
        if t == 0:
            for F in range(2):
                out.append((f"ds_read_b128 {v(xreg(c*2+ks,F),4)}, v{4+ks+hi} offset:{so + 2048*F}", gf))
        if variant == "qk":
            if t < 8: base, co = 2 + hi, 72 * (t >> 1) + 8 * (t & 1)
            else: base, co = 3 + hi, 32
        else:
            base, co = 2 + hi, 32 * t
        r = WB + (gf % 9) * 4
        for rr in range(2):
            out.append((f"ds_read_b64_tr_b16 {v(r+2*rr,2)}, v{base} offset:{so + (32*ks+8*rr)*288 + co}", gf))
        return out
    D = opt("gd", 6)
    if opt("cp", 0): a(f"s_setprio {opt('cp', 0)}")
    a("s_getpc_b64 s[58:59]")
    a("s_lshl_b32 s60, s3, 4")
    a("v_add_u32 v12, s60, v1")
    a("v_lshlrev_b32 v12, 7, v12")
    a("s_mov_b32 exec_lo, 0xffff")
    a("s_mov_b32 exec_hi, 0")
    a("global_load_dword v13, v12, s[58:59]")
    a("s_mov_b64 exec, -1")
    st(1)
    a("s_barrier")
    st(2)
    for gf in range(D):
        for t_, tag in reads(gf): lg.issue(t_, tag)
    def epi(kind, SC1=SC1):
        out = []
        def cv(r, A):
            o = [f"v_mul_f32 v{A+i}, s10, v{A+i}" for i in range(4)] if kind == "q" else []
            return o + [f"v_cvt_pk_bf16_f32 v{r}, v{A}, v{A+1}", f"v_cvt_pk_bf16_f32 v{r+1}, v{A+2}, v{A+3}"]
        if kind == "v":
            for t in range(9):
                r = T + t * 4
                out.append((t, cv(r, accr(t, 0)) + cv(r + 2, accr(t, 1)) + [f"buffer_store_dwordx4 {v(r,4)}, v10, {WSR}, s13 offen offset:{256*t} {SC1}"]))
            return out
        for P in range(4):
            out.append((2 * P, cv(T + P * 8, accr(2 * P, 0)) + cv(T + P * 8 + 4, accr(2 * P, 1))))
            o = []
            for F in range(2):
                r = T + (P * 2 + F) * 4
                o += cv(r + 2, accr(2 * P + 1, F)) + [f"buffer_store_dwordx4 {v(r,4)}, v10, {WSR}, s8 offen offset:{128*F} {SC1}"]
            if P < 3: o.append("s_add_u32 s8, s8, s9")
            out.append((2 * P + 1, o))
        out.append((8, cv(T + 32, accr(8, 0)) + cv(T + 34, accr(8, 1)) + [f"buffer_store_dwordx4 {v(T+32,4)}, v11, {WSR}, 0 offen {SC1}"]))
        return out
    kind_ = None
    def chunk(c, lg, pieces=None):
        drip = []
        per = {"q": 4, "k": 2, "v": 2}
        for f in range(18):
            gf = c * 18 + f
            ks, t = kt(c, f)
            if f == 18 - D and c < 8: a("s_barrier")
            lg.wait(gf)
            if gf == 80:
                a("buffer_load_dwordx2 v[236:237], v238, s[52:55], 0 offen sc1")
            rd = reads(gf + D) if gf + D < 162 else []
            w = WB + (gf % 9) * 4
            half = (len(rd) + 1) // 2
            if pieces and TMAJ and ks == 1:
                while pieces and pieces[0][0] < t: drip += pieces.pop(0)[1]
            for F in range(2):
                cc = "0" if (c == 0 and ks == 0) else v(accr(t, F), 4)
                if variant == "qk":
                    a(f"v_mfma_f32_16x16x32_bf16 {v(accr(t,F),4)}, {v(w,4)}, {v(xreg(c*2+ks,F),4)}, {cc}")
                else:
                    a(f"v_mfma_f32_16x16x32_bf16 {v(accr(t,F),4)}, {v(xreg(c*2+ks,F),4)}, {v(w,4)}, {cc}")
                for t_, tag in (rd[:half] if F == 0 else rd[half:]): lg.issue(t_, tag)
                for _ in range(per[kind_] if pieces is not None else 0):
                    if drip: a(drip.pop(0))
        if pieces is not None:
            st(3)
            for x in drip: a(x)
            for _, o in pieces:
                for x in o: a(x)
    for c in range(8): chunk(c, lg)
    q0 = list(lg.q)
    def tail(kind):
        nonlocal kind_
        kind_ = kind
        if LOC == 2:
            L = lab("GT" + kind)
            a("s_cmp_eq_u32 s11, 0")
            a(f"s_cbranch_scc1 {L}")
            lg.q = list(q0); chunk(8, lg, epi(kind, ""))
            a("s_branch GC_POST")
            a.label(L)
        lg.q = list(q0); chunk(8, lg, epi(kind))
        a("s_branch GC_POST")
    if variant == "v":
        tail("v")
        return
    a("s_mov_b32 s8, 0")
    a(f"s_mov_b32 s10, {hex(f32bits(QSCALE))}")
    a("s_cmp_lg_u32 s4, 0")
    a("s_cbranch_scc1 GC_NOSCALE")
    tail("q")
    a.label("GC_NOSCALE")
    tail("k")

def g_compute(a, st):
    a("s_lshl_b32 s63, s14, 4")
    a("s_lshr_b32 s62, s6, 2")
    a("s_add_u32 s63, s63, s62")
    a("s_lshl_b32 s63, s63, 7")
    a(f"s_add_u32 s63, s63, {W_FQ}")
    if LOC == 2:
        a("s_lshr_b32 s11, s6, 3")
        a("s_cmp_lg_u32 s11, 3")
        a("s_cselect_b32 s11, 1, 0")
        a("s_cmp_eq_u32 s4, 0")
        a("s_cselect_b32 s11, 1, s11")
    a("v_and_b32 v14, 15, v1")
    a("v_lshrrev_b32 v15, 4, v1")
    a("v_lshrrev_b32 v16, 1, v14")
    a("v_xor_b32 v16, v16, v15")
    a("v_lshlrev_b32 v16, 4, v16")
    a("v_lshl_add_u32 v16, v14, 7, v16")
    a("s_lshl_b32 s12, s3, 12")
    a(f"s_add_u32 s12, s12, {CW1}")
    a("v_add_u32 v4, s12, v16")
    a("v_xor_b32 v5, 64, v4")
    a(f"v_add_u32 v8, {2*CH1}, v4")
    a(f"v_add_u32 v9, {2*CH1}, v5")
    a("v_lshrrev_b32 v16, 1, v15")
    a("v_lshlrev_b32 v16, 4, v16")
    a("v_and_b32 v17, 1, v15")
    a("v_lshl_add_u32 v16, v17, 2, v16")
    a("v_lshrrev_b32 v17, 2, v14")
    a("v_add_u32 v16, v16, v17")
    a("v_mul_u32_u24 v16, 288, v16")
    a("v_and_b32 v17, 3, v14")
    a("s_waitcnt lgkmcnt(0)")
    srd(a, 40, P_WS, W_END)
    srd(a, 52, P_DBG, 256)
    a("v_mov_b32 v238, 0")
    if not opt("etp", 0): publish_tag(a)
    tab_load(a)
    a("s_waitcnt lgkmcnt(0)")
    if opt("pt", 1):
        a("s_mov_b64 exec, 1")
        a(f"buffer_load_dword v252, v238, {WSR}, s63 offen")
        a("s_mov_b64 exec, -1")
    a("s_cmp_eq_u32 s4, 2")
    a("s_cbranch_scc1 GC_V")
    a("v_lshrrev_b32 v18, 1, v17")
    a("v_mul_u32_u24 v18, 40, v18")
    a("v_and_b32 v19, 1, v17")
    a("v_lshl_add_u32 v18, v19, 4, v18")
    a("v_add_u32 v2, v16, v18")
    a("v_mul_u32_u24 v18, 72, v17")
    a("v_add_u32 v3, v16, v18")
    a(f"v_add_u32 v6, {2*CH1}, v2")
    a(f"v_add_u32 v7, {2*CH1}, v3")
    a("s_cmp_eq_u32 s4, 0")
    a(f"s_cselect_b32 s13, {W_QM}, {W_K}")
    a(f"s_mov_b32 s10, {W_KT}")
    a(f"s_cselect_b32 s10, {W_QT}, s10")
    a("s_lshl_b32 s9, s5, 9")
    a("s_add_u32 s9, s9, s6")
    a("s_lshl_b32 s9, s9, 10")
    a("s_add_u32 s13, s13, s9")
    a("s_mov_b32 s12, 65536")
    a("v_and_b32 v16, 7, v14")
    a("v_lshrrev_b32 v17, 3, v14")
    a("v_lshl_add_u32 v16, v17, 4, v16")
    a("v_lshrrev_b32 v17, 1, v15")
    a("v_mul_lo_u32 v17, v17, s12")
    a("v_and_b32 v18, 1, v15")
    a("v_lshl_add_u32 v17, v18, 9, v17")
    a("v_lshl_add_u32 v17, v16, 4, v17")
    a("v_add_u32 v10, s13, v17")
    a("s_lshl_b32 s9, s5, 8")
    a("s_add_u32 s9, s9, s6")
    a("s_lshl_b32 s9, s9, 8")
    a("s_add_u32 s10, s10, s9")
    a("v_lshlrev_b32 v17, 14, v15")
    a("v_lshl_add_u32 v17, v14, 4, v17")
    a("v_add_u32 v11, s10, v17")
    a("s_lshl_b32 s9, s12, 1")
    g_gemm(a, "qk", st)
    a.label("GC_V")
    a("v_lshl_add_u32 v2, v17, 3, v16")
    a(f"v_add_u32 v6, {2*CH1}, v2")
    a("s_lshl_b32 s9, s5, 6")
    a("s_add_u32 s9, s9, s6")
    a("s_mul_i32 s9, s9, 9216")
    a(f"s_add_u32 s13, s9, {W_V}")
    a("v_mul_u32_u24 v16, 2304, v15")
    a("v_lshl_add_u32 v10, v14, 4, v16")
    g_gemm(a, "v", st)
    a.label("GC_POST")
    st(4)
    a("s_mov_b32 s101, 0")
    a("s_mov_b32 s29, 0")
    a("s_mov_b32 s10, 0")
    a("s_waitcnt vmcnt(9)")
    tag_from(a, 236)
    a("s_lshl_b32 s9, s3, 2")
    a(f"s_add_u32 s9, s9, {L_SYNC + 32}")
    a("v_mov_b32 v2, s9")
    a("v_mov_b32 v3, s56")
    a("ds_write_b32 v2, v3")
    a("s_branch M_AL")

W2V = 240
def y_flag(a, vt, wait=True):
    if opt("bare", 0): return
    L = lab("YF")
    a("s_cmp_eq_u32 s101, 0")
    a(f"s_cbranch_scc1 {L}")
    if wait: a("s_waitcnt vmcnt(0)")
    set_flag(a, "s101", vt)
    a("s_mov_b32 s101, 0")
    a.label(L)

def o_flag(a):
    L = lab("OF")
    a(f"s_cmp_lg_u32 s15, {opt('fw', 5)}")
    a(f"s_cbranch_scc1 {L}")
    set_flag(a, "s63", 248)
    a.label(L)
    y_flag(a, 248, wait=False)

def q_pref(a):
    if opt("bare", 0): return
    L = lab("QP")
    a("s_cmp_lg_u32 s60, 13")
    a(f"s_cbranch_scc1 {L}")
    a("s_mov_b32 s60, 11")
    task_map(Ren(a, 0, {4: 16, 5: 17, 6: 18, 7: 19}))
    a("s_cmp_ge_u32 s17, 288")
    a(f"s_cbranch_scc1 {L}")
    a("v_lshrrev_b32 v140, 3, v1")
    a("s_lshl_b32 s58, s19, 3")
    a("v_add_u32 v140, s58, v140")
    a("v_mul_u32_u24 v140, 9216, v140")
    a("v_and_b32 v141, 7, v1")
    a("s_lshl_b32 s58, s18, 7")
    a("v_lshl_add_u32 v141, v141, 4, s58")
    a("v_add_u32 v140, v140, v141")
    a("v_add_u32 v141, 4608, v140")
    srd(a, 48, P_BQ, 2048 * 1152)
    for r in range(8):
        a(f"buffer_load_dwordx4 {v(144+4*r,4)}, v{140+(r>>2)}, s[48:51], 0 offen offset:{1152*(r&3)} nt")
    a.label(L)

def w2_tail(a):
    if opt("bare", 0): return
    L = lab("WT")
    a("s_cmp_lg_u32 s60, 8")
    a(f"s_cbranch_scc1 {L}")
    w2_issue(a, "8", tail=True)
    a("s_mov_b32 s60, 9")
    a.label(L)

def w2_step(a):
    if opt("bare", 0): return
    L = lab("WS")
    a("s_cmp_ge_u32 s60, 8")
    a(f"s_cbranch_scc1 {L}")
    a("s_bfe_u32 s58, s2, 0x20003")
    a("s_lshl1_add_u32 s58, s58, s60")
    a("s_and_b32 s58, s58, 7")
    w2_issue(a, "s58")
    a(f"s_add_u32 s60, s60, {2 if WALL else 1}")
    a.label(L)

def w2_issue(a, c, tail=False):
    a(f"s_mul_i32 s59, {c}, 12288")
    a("s_add_u32 m0, s59, s61")
    if tail: a("s_mov_b32 s59, s1")
    else:
        a(f"s_mul_i32 s59, {c}, {72*1152}")
        a("s_add_u32 s59, s59, s62")
    for j in range(3):
        a(f"buffer_load_dwordx4 v{W2V+(3 if tail else 0)+j}, s[44:47], s59 offen offset:{1024*j} lds")

def head_block(a, sb):
    if LOC:
        a("s_and_b32 s14, s2, 3")
        a("s_lshl_b32 s14, s14, 3")
        a(f"s_bfe_u32 s{sb}, s2, 0x30003")
        a(f"s_add_u32 s14, s14, s{sb}")
        a(f"s_lshr_b32 s{sb}, s2, 6")
        a(f"s_add_u32 s{sb}, s{sb}, 1")
        a(f"s_and_b32 s{sb}, s{sb}, 3")
        a("s_and_b32 s58, s2, 4")
        a(f"s_add_u32 s{sb}, s{sb}, s58")
        return
    a("s_and_b32 s14, s2, 7")
    a("s_lshl_b32 s14, s14, 2")
    a(f"s_bfe_u32 s{sb}, s2, 0x20003")
    a(f"s_add_u32 s14, s14, s{sb}")
    a(f"s_lshr_b32 s{sb}, s2, 5")
    a(f"s_add_u32 s{sb}, s{sb}, 1")
    a(f"s_and_b32 s{sb}, s{sb}, 7")

def task_map(a):
    if LOC:
        a("s_bfe_u32 s4, s2, 0x30003")
        a("s_lshl_b32 s4, s4, 2")
        a("s_and_b32 s5, s2, 3")
        a("s_add_u32 s4, s4, s5")
        a("s_andn2_b32 s5, 4, s2")
        a("s_lshl3_add_u32 s4, s5, s4")
    else: a("s_sub_u32 s4, s2, 192")
    a("s_lshl_b32 s5, s15, 6")
    a("s_add_u32 s5, s5, s4")
    a("s_and_b32 s6, s4, 7")
    a("s_lshr_b32 s7, s5, 3")
    a("s_cmp_ge_u32 s5, 256")
    a("s_cselect_b32 s6, 8, s6")
    a("s_cselect_b32 s7, s4, s7")

def publish_tag(a, wv=0):
    L = lab("NT")
    a(f"s_xor_b32 s58, s15, {wv}")
    a("s_or_b32 s58, s2, s58")
    a("s_cmp_lg_u32 s58, 0")
    a(f"s_cbranch_scc1 {L}")
    a("s_memrealtime s[58:59]")
    srd(a, 52, P_DBG, 256)
    a("v_mov_b32 v238, 0")
    a("s_waitcnt lgkmcnt(0)")
    a("s_or_b32 s58, s58, 1")
    a("v_mov_b32 v236, s58")
    a("v_mov_b32 v237, s59")
    a("s_mov_b64 exec, 1")
    a("buffer_store_dwordx2 v[236:237], v238, s[52:55], 0 offen sc1")
    a("s_mov_b64 exec, -1")
    a.label(L)

def s_chan(a):
    a("s_lshl_b32 s28, s4, 2")
    a("s_sub_u32 s28, s28, 128")
    a("s_lshl_b32 s9, s4, 1")
    a("s_add_u32 s9, s9, 126")
    a("s_cmp_ge_u32 s4, 32")
    a("s_cselect_b32 s28, s28, s9")
    a("s_cselect_b32 s9, 0, 4")

def s_helper(a):
    a = Ren(a, 0, {4: 8, 5: 9, 6: 10, 7: 11})
    a("s_cmp_lt_u32 s15, 5")
    a("s_cbranch_scc1 SH_END")
    a("s_sub_u32 s4, s2, 192")
    a("s_lshr_b32 s4, s4, 3")
    a("s_sub_u32 s5, s15, 5")
    a("s_lshl_b32 s5, s5, 3")
    a("s_add_u32 s4, s4, s5")
    a(f"s_add_u32 s4, s4, {22*KB0}")
    a("s_mov_b32 s47, 0x00020000")
    a.label("SH_LOOP")
    a("s_mul_i32 s5, s4, 745")
    a("s_lshr_b32 s5, s5, 14")
    for u in range(256): assert (u * 745) >> 14 == u // 22
    a("s_mul_i32 s6, s5, 22")
    a("s_sub_u32 s6, s4, s6")
    a("v_lshl_add_u32 v20, s6, 6, v1")
    line_addr(a, 20, 21, 22, 23)
    a("s_cmp_lt_u32 s6, 8")
    a("s_cselect_b64 vcc, -1, 0")
    a(f"s_cselect_b32 s44, s{P_X}, s{P_W}")
    a(f"s_cselect_b32 s45, s{P_X+1}, s{P_W+1}")
    a(f"s_mov_b32 s46, {576*3456}")
    a(f"s_cselect_b32 s46, {2048*1152}, s46")
    a(f"s_mov_b32 s7, {64*3456}")
    a("s_cselect_b32 s7, 128, s7")
    a("s_mul_i32 s7, s7, s5")
    a("v_cndmask_b32 v21, v22, v21, vcc")
    a("s_add_u32 s4, s4, 24")
    a("buffer_load_dword v252, v21, s[44:47], s7 offen")
    if opt("thr", 0): a(f"s_waitcnt vmcnt({opt('thr', 0) - 1})")
    a("s_cmp_lt_u32 s4, 198")
    a("s_cbranch_scc1 SH_LOOP")
    a.label("SH_END")

def g_stage1(a, st):
    task_map(a)
    a("s_cmp_ge_u32 s5, 288")
    a("s_cbranch_scc1 G1_SKIP")
    a("v_and_b32 v10, 7, v1")
    a("v_lshrrev_b32 v11, 3, v1")
    a("s_lshl_b32 s9, s7, 3")
    a("v_add_u32 v3, s9, v11")
    a("s_lshl_b32 s8, s6, 3")
    a("v_add_u32 v2, s8, v10")
    a("v_mul_u32_u24 v5, 9216, v3")
    a("v_lshl_add_u32 v5, v2, 4, v5")
    a("v_subrev_u32 v4, 4608, v5")
    a("v_add_u32 v6, 4608, v5")
    a("v_xor_b32 v12, v10, v11")
    a("v_lshl_add_u32 v13, v10, 3, v12")
    a("s_lshr_b32 s10, s15, 1")
    a(f"s_mul_i32 s10, s10, {CHN2 - 8192}")
    a("s_lshl_b32 s11, s15, 12")
    a("s_add_u32 s10, s10, s11")
    a(f"s_add_u32 s10, s10, {CBASE + XO2}")
    a("v_lshl_add_u32 v13, v13, 4, s10")
    a("v_lshl_add_u32 v14, v1, 4, s10")
    a("v_add_u32 v8, s8, v11")
    a("v_lshlrev_b32 v8, 15, v8")
    a("v_add_u32 v9, s9, v12")
    a("v_lshlrev_b32 v9, 4, v9")
    a("v_sub_u32 v8, v8, v9")
    a(f"v_add_u32 v8, {W_U + 4080}, v8")
    a("s_waitcnt lgkmcnt(0)")
    srd(a, 40, P_WS, W_END)
    if opt("defer", 0): get_tag(a, 236)
    st(1)
    srd(a, 44, P_BK, 2048 * 1152)
    srd(a, 48, P_BV, 2048 * 1152)
    srd(a, 52, P_SH, 576 * 8)
    KB = 16; VB = KB + 44; SB = VB + 32; WF = SB + 16
    a("s_add_u32 m0, s10, 3072")
    a("s_lshl_b32 s11, s6, 9")
    a("v_lshlrev_b32 v7, 4, v1")
    a("s_mov_b32 exec_hi, 0")
    a("buffer_load_dwordx4 v7, s[52:55], s11 offen lds")
    a("s_mov_b32 exec_hi, -1")
    for r in (8, 9, 10, 0, 1, 2, 3, 4, 5, 6, 7):
        rr = r + 1
        if r == 0: a("s_mov_b64 exec, 0xff")
        a(f"buffer_load_dwordx4 {v(KB+4*r,4)}, v{4+rr//4}, s[44:47], 0 offen offset:{1152*(rr%4)} nt")
        if r == 2: a("s_mov_b64 exec, -1")
    a("s_barrier")
    VL = opt("vl", 0)
    def vloads():
        for r in range(8):
            rr = r + 4
            a(f"buffer_load_dwordx4 {v(VB+4*r,4)}, v{4+rr//4}, s[48:51], 0 offen offset:{1152*(rr%4)} nt")
    if not VL: vloads()
    if KM and opt("hb", 1): a("s_barrier")
    a("s_getpc_b64 s[58:59]")
    a("v_lshlrev_b32 v15, 7, v1")
    a("s_mov_b32 exec_hi, 0")
    a("global_load_dword v252, v15, s[58:59]")
    a("s_mov_b32 exec_hi, -1")
    a("s_mov_b32 s9, 0xffff0000")
    a("v_lshl_add_u32 v7, v10, 6, s10")
    a("v_subrev_u32 v9, 128, v14")
    a(f"s_waitcnt vmcnt({6 if VL else 14})")
    for j in range(4): a(f"ds_read_b128 {v(SB+4*j,4)}, v7 offset:{3072 + 16*j}")
    for r in range(3): a(f"ds_write_b128 v14, {v(KB+4*(8+r),4)} offset:{1024*r}")
    a("s_mov_b32 exec_lo, 0xffffff00")
    for r in range(3): a(f"ds_read_b128 {v(KB+4*r,4)}, v9 offset:{1024*r}")
    a("s_mov_b32 exec_lo, -1")
    a("s_waitcnt lgkmcnt(0)")
    for j in range(8):
        p = j >> 1
        for tap in range(4):
            src = SB + 2 * j + (tap >> 1)
            dst = WF + (p * 4 + tap) * 2 + (j & 1)
            if tap & 1: a(f"v_and_b32 v{dst}, s9, v{src}")
            else: a(f"v_lshlrev_b32 v{dst}, 16, v{src}")
    KF = WF + 32; KS = KF + 22; VF = KB; OB = VF + 16; RB = OB + 8
    assert KS + 64 <= 236
    a(f"s_waitcnt vmcnt({1 if VL else 9})")
    st(2)
    for p in range(4):
        if VL == p + 1: vloads()
        for r in range(11):
            a(f"v_lshlrev_b32 v{KF+2*r}, 16, v{KB+4*r+p}")
            a(f"v_and_b32 v{KF+2*r+1}, s9, v{KB+4*r+p}")
        W = lambda tap: v(WF + (p * 4 + tap) * 2, 2)
        UF = KS + 16 * p
        for r in range(8):
            a(f"v_pk_mul_f32 {v(UF+2*r,2)}, {v(KF+2*r,2)}, {W(3)}")
        for tap in (2, 1, 0):
            for r in range(8):
                a(f"v_pk_fma_f32 {v(UF+2*r,2)}, {v(KF+2*(r+3-tap),2)}, {W(tap)}, {v(UF+2*r,2)}")
    srd(a, 52, P_DBG, 256)
    a("v_mov_b32 v238, 0")
    a("buffer_load_dwordx2 v[236:237], v238, s[52:55], 0 offen sc1")
    tab_load(a)
    a(f"s_waitcnt vmcnt({5 if VL else 6})")
    st(14)
    def flush_stores(p):
        a("s_waitcnt lgkmcnt(0)")
        for e in range(2):
            a(f"s_mov_b32 s10, {(2*p+e)*4096}")
            a(f"buffer_store_dwordx4 {v(RB+e*4,4)}, v8, {WSR}, s10 offen {SC1}")
    for p in range(4):
        UF = KS + 16 * p
        for r in range(8):
            a(f"v_lshlrev_b32 v{VF+2*r}, 16, v{VB+4*r+p}")
            a(f"v_and_b32 v{VF+2*r+1}, s9, v{VB+4*r+p}")
        if p > 0: flush_stores(p - 1)
        for r in range(8):
            a(f"v_pk_mul_f32 {v(UF+2*r,2)}, {v(UF+2*r,2)}, {v(VF+2*r,2)}")
        for e in range(2):
            o = OB + e * 4
            for dw in range(4):
                hi_r = 7 - 2 * dw
                a(f"v_cvt_pk_bf16_f32 v{o+dw}, v{UF+2*hi_r+e}, v{UF+2*(hi_r-1)+e}")
            a(f"ds_write_b128 v13, {v(o,4)} offset:{e*1024}")
        for q in range(2):
            a(f"ds_read_b128 {v(RB+q*4,4)}, v14 offset:{q*1024}")
    flush_stores(3)
    st(3)
    a("s_waitcnt vmcnt(0)")
    tag_from(a, 236)
    a("s_lshl_b32 s9, s6, 5")
    a("s_add_u32 s9, s9, s7")
    a("s_lshl_b32 s9, s9, 7")
    a(f"s_add_u32 s9, s9, {W_FU}")
    set_flag(a, "s9", 236)
    st(4)
    a("s_branch G1_DONE")
    a.label("G1_SKIP")
    a("s_waitcnt lgkmcnt(0)")
    srd(a, 40, P_WS, W_END)
    a("v_lshlrev_b32 v20, 7, v1")
    code_ptr(a, 62, "M_CONV1")
    a("s_bfe_u32 s9, s2, 0x30003")
    a("s_lshl_b32 s9, s9, 11")
    a("v_add_u32 v21, s9, v20")
    a("s_mov_b32 exec_lo, 0xffff")
    a("s_mov_b32 exec_hi, 0")
    a("global_load_dword v252, v21, s[62:63]")
    a("s_mov_b64 exec, -1")
    st(1)
    tab_load(a)
    if opt("smw", 0):
        srd(a, 44, P_WO, 576 * 1152)
        a("s_mul_i32 s9, s4, 3")
        a("s_add_u32 s9, s9, s15")
        a("s_sub_u32 s9, s9, 5")
        a("s_mul_i32 s9, s9, 3456")
        a("s_mov_b64 exec, 0x7ffffff")
        a("buffer_load_dword v252, v20, s[44:47], s9 offen")
        a("s_mov_b64 exec, -1")
    a("s_barrier")
    if KM:
        if opt("hb", 1): a("s_barrier")
        s_helper(a)
    get_tag(a, 236)
    a.label("G1_DONE")
    a("s_barrier")
    s_chan(a)
    a("s_lshr_b32 s29, s15, 1")
    a("s_add_u32 s28, s28, s29")
    a("s_mov_b32 s101, 0")
    a("s_cmp_lt_u32 s15, s9")
    a("s_cselect_b32 s10, 1, 3")
    a("s_cselect_b32 s29, 0, s29")
    a("s_cbranch_scc1 M_AL")

CSM = {4: 16, 5: 17, 6: 18, 7: 19, 8: 24, 9: 25, 10: 26, 11: 27, 12: 28, 13: 29, 14: 0, 44: 52, 45: 53, 46: 54, 47: 55, 62: 63}
def m_conv(a0, st, part):
    a = Ren(a0, 116, CSM)
    XB = 20
    if part == 1: m_conv1(a0, a, st)
    else: m_conv2(a0, a, st)

def cv_flagaddr(a):
    a("s_lshr_b32 s10, s12, 6")
    a("s_lshl_b32 s10, s10, 12")
    a(f"s_add_u32 s10, s10, {W_FU}")
    a("v_lshl_add_u32 v4, v1, 7, s10")

def cv_usetup(a):
    a("s_and_b32 s4, s15, 1")
    a("v_lshlrev_b32 v2, 4, v1")
    a("s_lshl_b32 s6, s12, 12")
    a(f"s_add_u32 s10, s6, {W_U}")
    srd(a, 48, P_WS, 4096, "s10")
    a("s_lshl_b32 s11, s4, 11")

def cv_uload(a):
    XB = 20
    for j in range(2):
        a(f"buffer_load_dwordx4 {v(XB+8*j,4)}, v2, s[48:51], s11 offen offset:{1024*j} sc1")
        a(f"buffer_load_dwordx4 {v(XB+8*j+4,4)}, v2, s[48:51], s11 offen offset:{1024*j+4} sc1")

def cv_hsetup(a):
    a(f"s_mul_i32 s13, s13, {CHN2}")
    a(f"s_add_u32 s13, s13, {CBASE}")
    a("v_and_b32 v14, 15, v1")
    a("v_lshrrev_b32 v15, 4, v1")
    a(f"s_sub_u32 s7, {576*4096}, s6")
    a(f"s_add_u32 s44, s{P_SK}, s6")
    a(f"s_addc_u32 s45, s{P_SK+1}, 0")
    a("s_mov_b32 s46, s7")
    a("s_mov_b32 s47, 0x00020000")
    a(f"s_mul_i32 s8, s4, {SC2}")
    a("s_add_u32 s8, s8, s13")
    a("s_lshl_b32 s9, s4, 2")
    a("s_add_u32 s9, s9, 4")
    a("s_sub_u32 s10, s4, 15")
    a("v_add_u32 v3, s10, v14")
    a("v_cmp_eq_u32 s[98:99], 0, v3")
    a("v_lshlrev_b32 v3, 2, v3")
    a("s_add_u32 m0, s8, 64")

def cv_hload(a):
    a("buffer_load_dword v16, v3, s[44:47], 0 offen")
    for j in range(4):
        a(f"buffer_load_dwordx4 v2, s[44:47], s9 offen offset:{1024*j} lds")

def cv_uwait(a0, a, st):
    cv_flagaddr(a)
    a(f"v_mov_b32 v5, {L_SYNC}")
    a0("s_cmp_eq_u32 s15, 7")
    a0("s_cbranch_scc1 MC_P")
    lds_wait(a, 5, 20, 18)
    a0("s_branch MC_W")
    a.label("MC_P")
    a(f"v_mov_b32 v5, {L_SYNC}")
    if opt("dst", 0):
        a0("s_waitcnt vmcnt(0)")
        st.d0 = True; st(1); st.d0 = False
    poll_flags(a, 4, 18, "-1", "0", slp=opt("slp", 0))
    if opt("dst", 0):
        a0("v_writelane_b32 v255, s58, 15")
        st(5)
    a("v_mov_b32 v18, s56")
    a("ds_write_b32 v5, v18 offset:20")
    a.label("MC_W")
    cv_uload(a)
    a.label("MC_HAVEU")
    a("s_lshr_b32 s5, s12, 1")
    a("s_lshl_b32 s5, s5, 2")
    a(f"s_load_dword s62, s[{P_SD}:{P_SD+1}], s5")
    st(6)

def m_conv1(a0, a, st):
    a.label("M_CONV1")
    cv_usetup(a)
    cv_hsetup(a)
    a.label("MC_H")
    cv_hload(a)
    a.label("MC_H2")
    if opt("dst", 0): st(4)
    if not opt("uo", 0): cv_uwait(a0, a, st)
    a("s_lshl_b32 s9, s12, 1")
    a("s_add_u32 s9, s9, s4")
    a("s_lshl_b32 s9, s9, 7")
    a(f"s_add_u32 s101, s9, {W_FY}")

def m_conv2(a0, a, st):
    XB = 20
    a("v_lshlrev_b32 v2, 4, v1")
    if opt("uo", 0):
        cv_usetup(a)
        cv_uwait(a0, a, st)
    a("v_lshl_add_u32 v4, v14, 2, s8")
    a(f"s_mul_i32 s10, s4, {SV2}")
    a("s_add_u32 s10, s10, s13")
    a("v_add_u32 v7, s10, v2")
    for i in range(4): a(f"v_mov_b32 v{36+i}, 0")
    a("s_mov_b32 exec_lo, 0x3fffffff")
    a("s_mov_b32 exec_hi, 0")
    a(f"ds_write_b128 v7, v[36:39] offset:{UO2 + 4096}")
    a("s_mov_b64 exec, -1")
    a("s_add_u32 s10, s13, s11")
    a("v_add_u32 v7, s10, v2")
    a("v_and_b32 v6, 1, v14")
    a(f"v_mul_u32_u24 v5, {SC2}, v6")
    a("v_lshrrev_b32 v8, 1, v14")
    a("v_lshl_add_u32 v5, v8, 3, v5")
    a("v_lshl_add_u32 v5, v15, 4, v5")
    a("s_lshl_b32 s10, s4, 8")
    a("s_add_u32 s10, s10, s13")
    a("v_add_u32 v5, s10, v5")
    a(f"v_mul_u32_u24 v6, {SV2}, v6")
    a("v_lshlrev_b32 v8, 6, v8")
    a("v_sub_u32 v6, v6, v8")
    a("v_lshl_add_u32 v6, v15, 4, v6")
    a(f"s_add_u32 s10, s10, {UO2 + 448}")
    a("v_add_u32 v6, s10, v6")
    a("s_lshl_b32 s10, s4, 12")
    a("s_add_u32 s10, s10, s13")
    a(f"s_add_u32 s10, s10, {XO2}")
    a("v_add_u32 v8, s10, v2")
    a("s_xor_b32 s14, s4, 1")
    a("s_lshl_b32 s10, s14, 12")
    a("s_add_u32 s10, s10, s13")
    a(f"s_add_u32 s10, s10, {XO2}")
    a("v_add_u32 v10, s10, v2")
    a("v_lshlrev_b32 v9, 7, v15")
    a("v_lshl_add_u32 v9, v14, 2, v9")
    a("v_add_u32 v9, s10, v9")
    a("s_add_u32 s11, s6, s11")
    a(f"s_add_u32 s11, s11, {W_Y}")
    a("s_lshl_b32 s10, s4, 2")
    a("s_add_u32 s10, s10, s13")
    a(f"s_add_u32 s10, s10, {PADO}")
    a("v_mov_b32 v11, s10")
    a("v_xor_b32 v12, 4, v11")
    a("s_waitcnt vmcnt(0) lgkmcnt(0)")
    a("s_and_b32 s10, s12, 1")
    a("s_cmp_eq_u32 s10, 0")
    a("s_cselect_b32 s10, 16, 0")
    a("s_lshl_b32 s62, s62, s10")
    a("s_and_b32 s62, s62, 0xffff0000")
    a("v_lshlrev_b32 v17, 16, v16")
    a("v_and_b32 v18, 0xffff0000, v16")
    a("v_add_f32 v17, s62, v17")
    a("v_cvt_pk_bf16_f32 v17, v17, v18")
    a("v_cndmask_b32 v16, v16, v17, s[98:99]")
    a("s_mov_b32 exec_lo, 0xffff")
    a("s_mov_b32 exec_hi, 0")
    a("ds_write_b32 v4, v16")
    a("s_mov_b64 exec, -1")
    for j in range(2):
        X = XB + 8 * j
        a(f"ds_write_b128 v7, {v(X,4)} offset:{UO2 + SV2 + 1024*j}")
        for i in range(4): a(f"v_alignbit_b32 v{X+4+i}, v{X+4+i}, v{X+i}, 16")
        a(f"ds_write_b128 v7, {v(X+4,4)} offset:{UO2 + 1024*j}")
    a("v_mov_b32 v13, s56")
    a("s_waitcnt lgkmcnt(0)")
    a("ds_write_b32 v11, v13")
    lds_wait(a, 12, 0, 16)
    st(7)
    HB = 16; UB = HB + 32; AB = UB + 32
    lg = LgTrack(a)
    def rdH(it, c, hf): lg.issue(f"ds_read_b64 {v(HB+4*c+2*hf,2)}, v5 offset:{512*c + 64*it + 8*hf}", ("H", it, c))
    def rdU(it, d, hf): lg.issue(f"ds_read_b128 {v(UB+4*d,4)}, v6 offset:{3584 - 512*d + 64*it}", ("U", it, d))
    pend = [("H", 0, 0, 0), ("H", 0, 0, 1)] + [("U", 0, d, 0) for d in range(7, -1, -1)] + [("H", 0, c, hf) for c in range(1, 8) for hf in range(2)]
    def pump(n):
        while pend and len(lg.q) < 14 and n > 0:
            k, i2, x, hf = pend.pop(0); n -= 1
            (rdH if k == "H" else rdU)(i2, x, hf)
    pump(14)
    for it in range(4):
        for c in range(8):
            for j in range(7, c - 1, -1):
                d = j - c
                need = [("H", it, c), ("U", it, d)]
                while any(p[:3] in need for p in pend):
                    if len(lg.q) >= 14: lg.wait(lg.q[0])
                    pump(1)
                lg.wait(*need)
                cc = "0" if (it == 0 and c == 0) else v(AB + 4 * j, 4)
                a(f"v_mfma_f32_16x16x32_bf16 {v(AB+4*j,4)}, {v(UB+4*d,4)}, {v(HB+4*c,4)}, {cc}")
                if it < 3:
                    if j == 7: pend.insert(0, ("U", it + 1, d, 0))
                    if j == c: pend.extend([("H", it + 1, c, 0), ("H", it + 1, c, 1)])
                pump(1)
    st(8)
    a("s_cmp_eq_u32 s4, 0")
    a("s_cbranch_scc1 MC_P0")
    for par in (1, 0):
        if par == 0: a.label("MC_P0")
        other = AB + 16 * (1 - par)
        for jj in range(4): a(f"ds_write_b128 v8, {v(other+4*jj,4)} offset:{1024*jj}")
        if par == 1: a("s_branch MC_J")
    a.label("MC_J")
    a("s_waitcnt lgkmcnt(0)")
    a("ds_write_b32 v11, v13 offset:8")

def conv_fin(a0, arr=True):
    if opt("bare", 0): return
    a = Ren(a0, 116, CSM)
    HB = 16; UB = HB + 32; AB = UB + 32
    E, P0, J = lab("CFE"), lab("CFP"), lab("CFJ")
    a("s_cmp_eq_u32 s13, 0")
    a(f"s_cbranch_scc1 {E}")
    a("s_mov_b32 s13, 0")
    a("v_lshlrev_b32 v2, 4, v1")
    lds_wait(a, 12, 8, 16)
    for jj in range(4): a(f"ds_read_b128 {v(HB+4*jj,4)}, v10 offset:{1024*jj}")
    a("s_cmp_eq_u32 s4, 0")
    a("s_waitcnt lgkmcnt(0)")
    a(f"s_cbranch_scc1 {P0}")
    for par in (1, 0):
        if par == 0: a.label(P0)
        for i in range(16): a(f"v_add_f32 v{HB+i}, v{AB+16*par+i}, v{HB+i}")
        if par == 1: a(f"s_branch {J}")
    a.label(J)
    for jj in range(4):
        for hi in range(2):
            a(f"v_cvt_pk_bf16_f32 v{UB+2*jj+hi}, v{HB+4*jj+2*hi}, v{HB+4*jj+2*hi+1}")
            a(f"ds_write_b32 v9, v{UB+2*jj+hi} offset:{512*jj + 64*hi}")
    for q in range(2): a(f"ds_read_b128 {v(HB+4*q,4)}, v10 offset:{1024*q}")
    a0("v_mov_b32 v251, s56")
    a("s_waitcnt lgkmcnt(0)")
    if arr: a0("ds_write_b32 v239, v251")
    for q in range(2):
        a(f"buffer_store_dwordx4 {v(HB+4*q,4)}, v2, {WSR}, s11 offen offset:{1024*q} {SC1}")
    a("s_waitcnt lgkmcnt(0)")
    a.label(E)

def m_aload(a, st):
    R = 130
    head_block(a, 0)
    a("s_lshl_b32 s1, s0, 3")
    a("s_lshl_b32 s48, s14, 6")
    a("s_add_u32 s48, s48, s1")
    a("s_lshl_b32 s48, s48, 10")
    a(f"s_add_u32 s49, s48, {W_K - 8192}")
    a("s_lshr_b32 s50, s14, 1")
    a("s_lshl_b32 s50, s50, 6")
    a("s_add_u32 s50, s50, s1")
    a("s_lshl_b32 s50, s50, 8")
    a(f"s_add_u32 s51, s50, {W_KT - 2048}")
    a(f"s_add_u32 s50, s50, {W_QT}")
    a("s_lshr_b32 s62, s14, 3")
    a("s_lshl_b32 s98, s62, 6")
    a("s_add_u32 s98, s98, s1")
    a("s_mul_i32 s98, s98, 9216")
    a("s_and_b32 s99, s14, 7")
    a("s_mul_i32 s99, s99, 288")
    a("s_add_u32 s98, s98, s99")
    a(f"s_add_u32 s98, s98, {W_V - 8*9216}")
    a(f"v_lshlrev_b32 v{R}, 4, v1")
    for j in range(5):
        a(f"v_add_u32 v{R+6}, {64*j}, v1")
        a(f"v_mul_u32_u24 v{R+6}, 57, v{R+6}")
        a(f"v_lshrrev_b32 v{R+6}, 10, v{R+6}")
        a(f"v_mul_u32_u24 v{R+6}, 2016, v{R+6}")
        a(f"v_add_u32 v{R+1+j}, v{R+6}, v{R}")
    a(f"v_add_u32 v{R+5}, 4096, v{R+5}")
    a("s_sub_u32 s1, 3, s15")
    a("s_lshl_b32 s99, s0, 1")
    a("s_lshl_b32 s62, s62, 4")
    a("s_add_u32 s62, s62, s99")
    a("s_add_u32 s99, s62, s1")
    a("s_add_u32 s99, s99, 62")
    a(f"v_lshl_add_u32 v{R+6}, v1, 6, s99")
    a("s_lshr_b32 s99, s1, 1")
    a("s_add_u32 s99, s99, s62")
    a(f"v_writelane_b32 v{R+6}, s99, 2")
    a(f"v_lshlrev_b32 v{R+6}, 7, v{R+6}")
    a(f"v_add_u32 v{R+6}, {W_FQ}, v{R+6}")
    a("s_lshr_b32 s62, s1, 1")
    a("s_or_b32 s62, s62, s0")
    a(f"v_mov_b32 v{R+7}, {L_SYNC}")
    a("s_cmp_ge_u32 s2, 192")
    a("s_cbranch_scc1 MA_NOPUB")
    a(f"v_lshl_add_u32 v{R+8}, s3, 2, v{R+7}")
    a("s_waitcnt vmcnt(0)")
    a(f"v_mov_b32 v{R+9}, s56")
    a(f"ds_write_b32 v{R+8}, v{R+9}")
    a("s_cmp_lg_u32 s3, 0")
    a("s_cbranch_scc1 MA_NOPUB1")
    for w in (1, 2, 3): lds_wait(a, R + 7, 4 * w, R + 8)
    set_flag(a, "s63", R + 8)
    a("s_branch MA_NOPUB")
    a.label("MA_NOPUB1")
    for w in range(4): lds_wait(a, R + 7, 32 + 4 * w, R + 8)
    a.label("MA_NOPUB")
    st(5)
    a("s_cmp_eq_u32 s62, 0")
    a("s_cselect_b32 s99, 4, 7")
    def ld_q():
        a("s_lshl_b32 s58, s1, 11")
        a(f"s_add_u32 m0, s58, {L_A + A_QM}")
        a("s_add_u32 s59, s48, s58")
        for j in range(2): a(f"buffer_load_dwordx4 v{R}, {WSR}, s59 offen offset:{1024*j} sc1 lds")
        a("s_lshl_b32 s58, s1, 9")
        a(f"s_add_u32 m0, s58, {L_A + A_QT}")
        a("s_add_u32 s59, s50, s58")
        a("s_mov_b32 exec_hi, 0")
        a(f"buffer_load_dwordx4 v{R}, {WSR}, s59 offen sc1 lds")
        a("s_mov_b32 exec_hi, -1")
    def ld_k():
        a("s_lshl_b32 s58, s1, 12")
        a(f"s_add_u32 m0, s58, {L_A + A_K}")
        a("s_add_u32 s59, s49, s58")
        for j in range(4): a(f"buffer_load_dwordx4 v{R}, {WSR}, s59 offen offset:{1024*j} sc1 lds")
        a("s_lshl_b32 s58, s1, 10")
        a(f"s_add_u32 m0, s58, {L_A + A_KT}")
        a("s_add_u32 s59, s51, s58")
        a(f"buffer_load_dwordx4 v{R}, {WSR}, s59 offen sc1 lds")
    def ld_v():
        a("s_mul_i32 s58, s1, 4608")
        a(f"s_add_u32 m0, s58, {L_A + A_V}")
        a("s_mul_i32 s59, s1, 36864")
        a("s_add_u32 s59, s59, s98")
        for j in range(4): a(f"buffer_load_dwordx4 v{R+1+j}, {WSR}, s59 offen offset:{1024*j} sc1 lds")
        a(f"s_add_u32 m0, s58, {L_A + A_V + 4096}")
        a("s_mov_b32 exec_hi, 0")
        a(f"buffer_load_dwordx4 v{R+5}, {WSR}, s59 offen sc1 lds")
        a("s_mov_b32 exec_hi, -1")
    if opt("sp", 0):
        a("s_mov_b32 s0, 0")
        a.label("MA_SP")
        a("s_mov_b32 exec_lo, s99")
        a("s_mov_b32 exec_hi, 0")
        a(f"buffer_load_dwordx2 {v(R+8,2)}, v{R+6}, {WSR}, 0 offen sc1")
        a("s_add_u32 s0, s0, 1")
        a("s_waitcnt vmcnt(0)")
        a(f"v_cmp_eq_u64 vcc, {TAG}, {v(R+8,2)}")
        a("s_mov_b64 exec, -1")
        a(f"s_cmp_lt_u32 s0, {SPIN}")
        a("s_cselect_b32 s62, 0, 7")
        a("s_or_b32 s62, s62, vcc_lo")
        a("s_and_b32 s62, s62, s99")
        a("s_cbranch_scc0 MA_SP")
        a("s_andn2_b32 s99, s99, s62")
        for bit, fn in ((2, ld_q), (0, ld_k), (1, ld_v)):
            L = lab("SP")
            a(f"s_bitcmp0_b32 s62, {bit}")
            a(f"s_cbranch_scc1 {L}")
            fn()
            a.label(L)
        a("s_cmp_lg_u32 s99, 0")
        a("s_cbranch_scc1 MA_SP")
        st(6)
    else:
        poll_flags(a, R + 6, R + 8, "s99", "0")
        st(6)
        ld_q()
        a("s_cmp_eq_u32 s62, 0")
        a("s_cbranch_scc1 MA_NEXT")
        ld_k(); ld_v()
    a.label("MA_NEXT")
    if WT == 1:
        srd(a, 44, P_WO, 576 * 1152)
        a(f"v_lshlrev_b32 v{R+12}, 7, v1")
        a("s_lshr_b32 s58, s2, 3")
        a("s_lshl_b32 s58, s58, 2")
        a("s_add_u32 s58, s58, s3")
        a("s_mul_i32 s58, s58, 5248")
        a("s_mov_b32 exec_hi, 0x1ff")
        a(f"buffer_load_dword v252, v{R+12}, s[44:47], s58 offen")
        a("s_mov_b32 exec_hi, -1")

MK = 64
QM = 12; QT = 16; KA = 20; VA = 36; S = [52, 68, 84]; O = 100; PM = 228; BIG = 116; TM = 248
def table_words():
    masks = []
    for r in range(16):
        m = 0
        for l in range(64):
            j = (r & 7) + 8 * (l >> 5) + 16 * (r >> 3)
            if j <= swap23(l & 31): m |= 1 << l
        masks.append(m)
    w = []
    for m in masks: w += [m & 0xffffffff, m >> 32]
    def lane(l):
        pm = [(0xffff if masks[2*p] >> l & 1 else 0) | (0xffff0000 if masks[2*p+1] >> l & 1 else 0) for p in range(8)]
        main, tail = [], []
        for j in range(3):
            u = 64 * j + l; row, pos = divmod(u, 12)
            unit = pos ^ ((row & 4) >> 1); kk = swap23(row)
            main.append(kk * 1152 + unit * 16 - 1024 * j)
            tail.append((18 * (kk >> 1) + 16 + (kk & 1)) * 1152 + unit * 16 - 1024 * j)
        rho, hh = l & 31, l >> 5
        tt = ((rho & 7) + 8 * (rho >> 4)) * 16 + (rho & 8)
        vt = (swap23(rho) if rho < 16 else rho) * 16 + 288 * hh
        return pm + main + tail + [tt, vt]
    L = [lane(l) for l in range(64)]
    for g in range(4):
        for l in range(64): w += L[l][4*g:4*g+4]
    assert all(0 <= x < 2**32 for x in w)
    return w

def tab_load(a, emit=None):
    emit = emit or a
    code_ptr(a, 58, "M_TAB")
    a("s_load_dwordx16 s[64:79], s[58:59], 0")
    a("s_load_dwordx16 s[80:95], s[58:59], 64")
    a("v_lshlrev_b32 v251, 4, v1")
    for g, r in enumerate((228, 232, 240, 244)):
        emit(f"global_load_dwordx4 {v(r,4)}, v251, s[58:59] offset:{128 + 1024*g}")

def aprep(a):
    a("s_lshr_b32 s60, s2, 5")
    a("s_mul_i32 s60, s60, 192")
    a(f"s_mul_i32 s62, s3, {18*1152}")
    a("s_add_u32 s62, s62, s60")
    a(f"s_mul_i32 s6, s3, {(8*18-18)*1152}")
    a("s_add_u32 s1, s62, s6")
    a("s_mul_i32 s61, s3, 3072")
    srd(a, 44, P_WO, 576 * 1152)
    head_block(a, 5)
    a("s_lshl_b32 s5, s5, 3")
    a("s_sub_u32 s59, 7, s15")
    a("s_cmp_lt_u32 s15, 4")
    a("s_cselect_b32 s59, s59, s3")
    a("s_add_u32 s5, s5, s59")
    a("v_and_b32 v8, 31, v1")
    a("v_lshrrev_b32 v9, 5, v1")
    a("s_lshl_b32 s6, s59, 10")
    a(f"s_add_u32 s6, s6, {L_A}")
    a("v_lshl_add_u32 v2, v1, 4, s6")
    a("s_and_b32 s7, s14, 1")
    a("s_lshl_b32 s7, s7, 2")
    a("s_lshl_b32 s8, s59, 8")
    a("s_add_u32 s7, s7, s8")
    a(f"s_add_u32 s7, s7, {L_A}")
    a("v_add_u32 v3, s7, v246")
    a("s_mul_i32 s6, s59, 1152")
    a(f"s_add_u32 s6, s6, {L_A + A_V}")
    a("v_add_u32 v4, s6, v247")
    for i in range(16): a(f"v_mov_b32 v{VA+i}, 0x3f803f80")
    a("s_mov_b32 s8, 0x3ffff")
    a("s_mov_b32 s9, 0x3ffff")
    a("v_lshrrev_b32 v5, 4, v8")
    a("v_lshlrev_b32 v5, 14, v5")
    a("v_lshl_add_u32 v5, v9, 8, v5")
    a("v_and_b32 v6, 15, v8")
    a("v_lshl_add_u32 v5, v6, 4, v5")
    a("v_lshlrev_b32 v6, 2, v8")
    a("s_lshl_b32 s12, s5, 15")
    a("s_lshl_b32 s13, s14, 9")
    a("s_add_u32 s12, s12, s13")
    a(f"s_add_u32 s12, s12, {W_OM}")
    a("s_lshl_b32 s13, s14, 13")
    a("s_lshl_b32 s6, s5, 7")
    a("s_add_u32 s13, s13, s6")
    a(f"s_add_u32 s13, s13, {W_OT}")
    a("v_cmp_gt_u32 vcc, 32, v1")
    a(f"v_mov_b32 v{TM}, 0x3f803f80")
    a(f"v_mov_b32 v{TM+1}, 0x3f80")
    for b in range(2):
        a(f"v_cndmask_b32 v{KA+8*b+5}, 0, v{TM}, vcc")
        a(f"v_cndmask_b32 v{KA+8*b+6}, 0, v{TM+1}, vcc")
        a(f"v_mov_b32 v{KA+8*b+7}, 0")
    a(f"v_mov_b32 v{QT}, 0")
    a(f"v_mov_b32 v{QT+2}, 0")
    a(f"v_mov_b32 v{QT+3}, 0")
    a(f"v_mov_b32 v{BIG}, 0x7b800000")
    a("s_mov_b32 s100, 0")
    if not opt("fast", 1): a(f"v_mov_b32 v{BIG}, 0")
    a("s_mov_b32 s6, 0x21800000")
    if WALL: a("s_lshr_b32 s60, s15, 2")
    else:
        a("s_cmp_lt_u32 s15, 4")
        a("s_cselect_b32 s60, 9, 0")
    a("s_cmp_ge_u32 s2, 192")
    a("s_cselect_b32 s60, 13, s60")

    a("v_lshlrev_b32 v117, 2, v1")
    a(f"v_add_u32 v117, {L_ARR}, v117")
    a("s_lshl_b32 s7, s15, 2")
    a(f"s_add_u32 s7, s7, {L_ARR}")
    a("v_mov_b32 v239, s7")
    a("s_lshr_b32 s7, s5, 3")
    a("s_lshl_b32 s7, s7, 5")
    a("s_add_u32 s7, s7, s14")
    a("s_lshl_b32 s7, s7, 7")
    a(f"s_add_u32 s7, s7, {W_FO}")

def m_attn(a, st):
    a("s_branch M_APREP")
    a.label("M_AL")
    m_aload(a, st)
    a.label("M_APREP")
    aprep(a)
    a("s_cmp_lt_u32 s10, 2")
    a("s_cbranch_scc1 MT_ALW")
    m_conv(a, st, 2)
    a("s_mov_b32 s10, 1")
    a("s_cmp_lt_u32 s15, 4")
    a("s_cbranch_scc1 M_AL")
    a("s_branch MT_NOY")
    a.label("MT_ALW")
    a(f"s_waitcnt vmcnt({5 if V2 else 1 if WT == 1 else 0})")
    a(f"s_setprio {3 - opt('pf', 2)}")
    a("v_mov_b32 v251, s56")
    a("ds_write_b32 v239, v251")
    st(9)
    arr_wait(a, 7 if opt("q3", 1) else 15, 117, TM)
    a("s_branch MT_GO")
    a.label("MT_NOY")
    a(f"s_mov_b64 exec, {14 if opt('q3', 1) else 15}")
    a(f"ds_read_b32 v{TM}, v117")
    a("s_waitcnt lgkmcnt(0)")
    a(f"v_cmp_ne_u32 vcc, s56, v{TM}")
    a("s_mov_b64 exec, -1")
    a("s_nop 3")
    a("s_cbranch_vccz MT_GO1")
    conv_fin(a, arr=False)
    arr_wait(a, 14 if opt("q3", 1) else 15, 117, TM)
    a("ds_write_b32 v239, v251")
    a.label("MT_GO1")
    a(f"s_setprio {opt('pf', 2)}")
    st(9)
    a.label("MT_GO")
    st(10)
    a(f"ds_read_b128 {v(QM,4)}, v2 offset:{A_QM}")
    a("s_mov_b32 exec_hi, 0")
    a(f"ds_read_b32 v{QT}, v3 offset:{A_QT}")
    a("s_mov_b32 exec_hi, -1")
    a.label("MT_REDO")
    if V2:
        a("s_cmp_lt_u32 s15, 4")
        a("s_cselect_b64 s[18:19], 7, 14")
    a("s_cmp_lt_u32 s5, 8")
    a("s_cselect_b64 vcc, -1, 0")
    rare = []
    def ool(cond, br, body):
        L, R = lab("OL"), lab("OR")
        if cond: a(cond)
        a(f"{br} {L}")
        a.label(R)
        rare.append((L, R, body))
    lg = LgTrack(a)
    kcount = [0]
    def rdK(t, tag):
        b = kcount[0] & 1; kcount[0] += 1
        lg.issue(f"ds_read_b128 {v(KA+8*b,4)}, v2 offset:{A_K + t*1024}", tag)
        lg.issue(f"ds_read_b32 v{KA+8*b+4}, v3 offset:{A_KT + t*256}", tag)
        return b
    def qk_m(b, D): return f"v_mfma_f32_32x32x16_bf16 {v(D,16)}, {v(KA+8*b,4)}, {v(QM,4)}, 0"
    def qk_t(b, D): return f"v_mfma_f32_32x32x16_bf16 {v(D,16)}, {v(KA+8*b+4,4)}, {v(QT,4)}, {v(D,16)}"
    def qk(b, tag, D):
        lg.wait(tag); a(qk_m(b, D)); a(qk_t(b, D))
    def rdV(t, vb, tag):
        a("s_mov_b64 exec, s[8:9]")
        for hf in range(2):
            lg.issue(f"ds_read_b128 {v(VA+8*vb+4*hf,4)}, v4 offset:{t*1152 + 576*hf}", tag)
        a("s_mov_b64 exec, -1")
    def pv_(P, vb, hf, first=False):
        C = "0" if first else v(O, 16)
        return f"v_mfma_f32_32x32x16_bf16 {v(O,16)}, {v(VA+8*vb+4*hf,4)}, {v(P+4*hf,4)}, {C}"
    MX = 10
    def maxes(R, first):
        for i in range(8):
            m = MX + (i & 1)
            if first and i < 2: a(f"v_max_f32 v{m}, v{R+2*i}, v{R+2*i+1}")
            else: a(f"v_max3_f32 v{m}, v{R+2*i}, v{R+2*i+1}, v{m}")
    def exit_if_done(n, label):
        def body():
            a(f"s_cmp_le_u32 s5, {n}")
            a(f"s_cbranch_scc1 {label}")
        ool(None, "s_cbranch_vccnz", body)
    b_d = rdK(8, "kd"); b_o = rdK(0, "ko")
    if not V2: rdV(8, 0, ("v", 8)); rdV(0, 1, ("v", 0))
    lg.wait("kd"); a(qk_m(b_d, S[0]))
    lg.wait("ko"); a(qk_m(b_o, S[1]))
    if WT == 2:
        a("v_lshlrev_b32 v251, 7, v1")
        a("s_and_b32 s58, s2, 0xf8")
        a("s_add_u32 s58, s58, s15")
        a("s_mul_i32 s58, s58, 2688")
        a("s_mov_b64 exec, 0x1fffff")
        a("buffer_load_dword v252, v251, s[44:47], s58 offen")
        a("s_mov_b64 exec, -1")
    a("s_cmp_lg_u32 s100, 0")
    a("s_cbranch_scc1 MT_HAVEM")
    maxes(S[0], True)
    a(f"v_max_f32 v{MX}, v{MX}, v{MX+1}")
    a(f"v_mov_b32 v{MX+1}, v{MX}")
    a(f"v_permlane32_swap_b32 v{MX}, v{MX+1}")
    a(f"v_min_f32 v{MX}, -v{MX}, -v{MX+1}")
    a(f"v_lshrrev_b32 v{QT+1}, 16, v{MX}")
    a.label("MT_HAVEM")
    b2 = {}
    a(qk_t(b_d, S[0])); b2[7] = rdK(7, ("k2", 7))
    a(qk_t(b_o, S[1])); b2[6] = rdK(6, ("k2", 6))
    def noold():
        for r in range(16): a(f"v_mov_b32 v{S[1]+r}, 0xf149f2ca")
    ool(None, "s_cbranch_vccnz", noold)
    def weave(valu, mf):
        mf = sorted(mf, key=lambda x: x[0])
        for i, t in enumerate(valu + [None]):
            while mf and mf[0][0] <= i:
                mf.pop(0)[1]()
            if t: a(t)
    va = [f"v_cndmask_b32 v{S[0]+r}, v{S[1]+r}, v{S[0]+r}, s[{MK+2*r}:{MK+2*r+1}]" for r in range(16)]
    va += [f"v_exp_f32 v{S[0]+r}, v{S[0]+r}" for r in range(16)]
    va += [f"v_cvt_pk_bf16_f32 v{S[0]+i}, v{S[0]+2*i}, v{S[0]+2*i+1}" for i in range(8)]
    va += [f"v_and_b32 v{S[0]+8+i}, v{S[0]+i}, v{PM+i}" for i in range(8)]
    va += [f"v_xor_b32 v{S[0]+i}, v{S[0]+i}, v{S[0]+8+i}" for i in range(8)]
    def m_qk7b(): a(qk_t(b2[7], S[2])); b2[5] = rdK(5, ("k2", 5))
    def m_v2():
        if not V2: return
        a("s_cmp_ge_u32 s15, 4")
        a("s_cbranch_scc1 MT_V2S")
        a("v_mov_b32 v251, s56")
        a(f"s_waitcnt vmcnt({1 if WT == 2 else 0})")
        a("ds_write_b32 v239, v251 offset:32")
        a.label("MT_V2S")
        arr_wait(a, "s[18:19]", 117, TM, off=32)
        lg.q = []
        a("s_cmp_lt_u32 s5, 8")
        a("s_cselect_b64 vcc, -1, 0")
        rdV(8, 0, ("v", 8)); rdV(0, 1, ("v", 0))
    def m_pvd0(): lg.wait(("v", 8), ("v", 0)); a(pv_(S[0] + 8, 0, 0, True))
    def m_pvd1(): a(pv_(S[0] + 8, 0, 1)); rdV(7, 0, ("v", 7))
    def m_qk7a(): lg.wait(("k2", 7)); a(qk_m(b2[7], S[2]))
    weave(va, [(10, m_qk7a), (19, m_qk7b), (opt("v2p", 30), m_v2), (47, m_pvd0), (55, m_pvd1)])
    bt = lambda t: S[(t + 1) % 3]
    vbuf = lambda t: (7 - t) & 1
    stubs = []
    if not opt("bare", 0):
        ool("s_cmp_lg_u32 s29, 0", "s_cbranch_scc1", lambda: conv_fin(a))
        ool("s_cmp_eq_u32 s60, 13", "s_cbranch_scc1", lambda: q_pref(a))
    exit_if_done(0, "MT_P2X")
    for n, t in enumerate(range(7, 0, -1)):
        cur = bt(t)
        va = [f"v_exp_f32 v{cur+r}, v{cur+r}" for r in range(8)]
        va += [f"v_cvt_pk_bf16_f32 v{cur+i}, v{cur+2*i}, v{cur+2*i+1}" for i in range(2)]
        va += [f"v_exp_f32 v{cur+r}, v{cur+r}" for r in range(8, 16)]
        va += [f"v_cvt_pk_bf16_f32 v{cur+i}, v{cur+2*i}, v{cur+2*i+1}" for i in range(2, 8)]
        mf = []
        if t > 1:
            def f1(t=t): lg.wait(("k2", t - 1)); a(qk_m(b2[t - 1], bt(t - 1)))
            def f2(t=t):
                a(qk_t(b2[t - 1], bt(t - 1)))
                if t - 3 >= 1: b2[t - 3] = rdK(t - 3, ("k2", t - 3))
            mf += [(0, f1), (4, f2)]
        if t == 7:
            def f3():
                a("s_cbranch_vccnz MT_NOOLD1"); a(pv_(S[0], 1, 0)); a.label("MT_NOOLD1")
            def f4():
                a("s_cbranch_vccnz MT_NOOLD2"); a(pv_(S[0], 1, 1)); a.label("MT_NOOLD2"); rdV(6, 1, ("v", 6))
        else:
            def f3(t=t): lg.wait(("v", t + 1)); a(pv_(bt(t + 1), vbuf(t + 1), 0))
            def f4(t=t):
                a(pv_(bt(t + 1), vbuf(t + 1), 1))
                if t - 1 >= 1: rdV(t - 1, vbuf(t - 1), ("v", t - 1))
        mf += [(9, f3), (14, f4)]
        weave(va, mf)
        if t == GT and not opt("bare", 0):
            if opt("ymid", 1): y_flag(a, TM)
            a("s_cmp_ge_u32 s60, 8")
            a("s_cbranch_scc1 MT_NOGATE")
            arr_wait(a, 255, 117, TM, slp=opt("slp", 0))
            a.label("MT_NOGATE")
        if t == GT:
            a("s_mov_b64 exec, 1")
            a(f"buffer_load_dword v252, v{QT+3}, {WSR}, s7 offen")
            a("s_mov_b64 exec, -1")
        if t == opt("prio_t", 3): a("s_setprio 0")
        if GT - 4 < t <= GT:
            w2_step(a)
            if not WALL: w2_step(a)
        if t == GT - 4: w2_tail(a)
        if t > 1:
            exit_if_done(n + 1, f"MT_X{t}")
            stubs.append(t)
    lg.wait(("v", 1))
    a(pv_(bt(1), vbuf(1), 0)); a(pv_(bt(1), vbuf(1), 1))
    a.label("MT_P2X")
    a(f"v_max3_f32 v{MX}, |v{O}|, |v{O+1}|, |v{O+2}|")
    a(f"v_max3_f32 v{MX+1}, |v{O+3}|, |v{O+4}|, |v{O+5}|")
    a(f"v_max3_f32 v{MX}, |v{O+6}|, |v{O+7}|, v{MX}")
    a(f"v_max3_f32 v{MX+1}, |v{O+8}|, |v{O+9}|, v{MX+1}")
    a(f"v_mul_f32 v{TM}, 0x5d800000, v{O+10}")
    a(f"v_max3_f32 v{MX}, v{MX}, v{MX+1}, v{TM}")
    a(f"v_rcp_f32 v{MX+1}, v{O+10}")
    a(f"v_cmp_nlt_f32 vcc, v{MX}, v{BIG}")
    a(f"v_cmp_nlt_f32 s[98:99], s6, v{O+10}")
    for i in range(10): a(f"v_mul_f32 v{O+i}, v{O+i}, v{MX+1}")
    a("s_or_b64 vcc, vcc, s[98:99]")
    a("s_cbranch_scc1 MT_BAD")
    a.label("MT_STORE")
    R = 128
    a(f"v_cvt_pk_bf16_f32 v{R+8}, v{O+8}, v{O+9}")
    for i in range(4): a(f"v_cvt_pk_bf16_f32 v{R+i}, v{O+2*i}, v{O+2*i+1}")
    a(f"buffer_store_dwordx4 {v(R,4)}, v5, {WSR}, s12 offen {SC1}")
    for i in range(4): a(f"v_mov_b32_dpp v{R+4+i}, v{R+8} quad_perm:[{i},{i},{i},{i}] row_mask:0xf bank_mask:0xf")
    a("s_mov_b32 exec_lo, 0x11111111")
    a("s_mov_b32 exec_hi, 0")
    a(f"buffer_store_dwordx4 {v(R+4,4)}, v6, {WSR}, s13 offen {SC1}")
    a("s_mov_b64 exec, -1")
    st(11)
    a("s_branch M_POST")
    for t in stubs:
        a.label(f"MT_X{t}")
        a("s_waitcnt lgkmcnt(0)")
        a(pv_(bt(t), vbuf(t), 0)); a(pv_(bt(t), vbuf(t), 1))
        a("s_branch MT_P2X")
    a.label("MT_BAD")
    a("s_cmp_lg_u32 s100, 0")
    a("s_cbranch_scc1 MT_STORE")
    a("s_mov_b32 s100, 1")
    a("s_waitcnt lgkmcnt(0)")
    XK = 128
    for i in (5, 6, 7): a(f"v_mov_b32 v{XK+i}, 0")
    def full_tile(D, offk, offt):
        a(f"ds_read_b128 {v(XK,4)}, v7 offset:{offk}")
        a(f"ds_read_b32 v{XK+4}, v9 offset:{offt}")
        a("s_waitcnt lgkmcnt(0)")
        a(f"v_mfma_f32_32x32x16_bf16 {v(D,16)}, {v(XK,4)}, {v(QM,4)}, 0")
        a(f"v_mfma_f32_32x32x16_bf16 {v(D,16)}, {v(XK+4,4)}, {v(QT,4)}, {v(D,16)}")
        a("s_nop 15")
    a(f"v_add_u32 v7, {A_K}, v2")
    a(f"v_add_u32 v9, {A_KT}, v3")
    full_tile(S[0], 8 * 1024, 8 * 256)
    full_tile(S[1], 0, 0)
    a("s_cmp_ge_u32 s5, 8")
    a("s_cbranch_scc1 MT_XOLD")
    noold()
    a.label("MT_XOLD")
    for r in range(16):
        a(f"v_cndmask_b32 v{S[0]+r}, v{S[1]+r}, v{S[0]+r}, s[{MK+2*r}:{MK+2*r+1}]")
    maxes(S[0], True)
    a("s_min_u32 s58, s5, 7")
    a.label("MT_EXLOOP")
    a("s_cmp_eq_u32 s58, 0")
    a("s_cbranch_scc1 MT_EXEND")
    full_tile(S[1], 7 * 1024, 7 * 256)
    a("v_subrev_u32 v7, 1024, v7")
    a("v_subrev_u32 v9, 256, v9")
    a("s_sub_u32 s58, s58, 1")
    maxes(S[1], False)
    a("s_branch MT_EXLOOP")
    a.label("MT_EXEND")
    a(f"v_max_f32 v{MX}, v{MX}, v{MX+1}")
    a(f"v_mov_b32 v{MX+1}, v{MX}")
    a(f"v_permlane32_swap_b32 v{MX}, v{MX+1}")
    a(f"v_min_f32 v{MX+1}, -v{MX}, -v{MX+1}")
    a("s_mov_b32 s58, 0x07060302")
    a(f"v_and_b32 v{TM}, 0xffff0000, v{MX+1}")
    a(f"v_sub_f32 v{TM+1}, v{MX+1}, v{TM}")
    a(f"v_perm_b32 v{QT+1}, v{TM+1}, v{TM}, s58")
    a(f"v_and_b32 v{TM}, 0xffff0000, v{TM+1}")
    a(f"v_sub_f32 v{TM+1}, v{TM+1}, v{TM}")
    a(f"v_lshrrev_b32 v{QT+2}, 16, v{TM+1}")
    a("s_branch MT_REDO")
    for L, R_, body in rare:
        a.label(L)
        body()
        a(f"s_branch {R_}")

def gemm2_dyn(a, st, OB, AB, WB, EA):
    LA = opt("dla", 4); NS = LA + 1
    PB = WB + 72
    a("s_lshl_b32 s10, s7, 11")
    a("v_add_u32 v6, s10, v6")
    a("s_lshl_b32 s10, s7, 17")
    a("s_add_u32 s9, s9, s10")
    a("s_mov_b32 s12, 0")
    a("s_mov_b32 s13, 0")
    a("s_mov_b32 s58, 0")
    lg = LgTrack(a); vm = VmTrack(a)
    rare = []
    def poll(back, cond):
        L = lab("DP")
        rare.append((L, back))
        return L
    def wreads(p, va, off):
        for t in range(6):
            r = WB + (p % NS) * 24 + t * 4
            for rr in range(2):
                lg.issue(f"ds_read_b64_tr_b16 {v(r+2*rr,2)}, v{va+(t&1)} offset:{off + rr*1536 + 64*(t>>1)}", p)
    def pick(p):
        B = lab("DK")
        a.label(B)
        if p < 8:
            a("s_lshr_b32 s14, s12, 1")
            a("s_and_b32 s14, s14, s12")
            a("s_andn2_b32 s14, s14, s13")
            a("s_and_b32 s14, s14, 0x5555")
            a(f"s_cbranch_scc0 {poll(B, None)}")
            a("s_ff1_i32_b32 s14, s14")
            a("s_bitset1_b32 s13, s14")
            a("s_lshl_b32 s10, s14, 9")
            a("s_add_u32 s10, s10, s8")
            vm.issue(f"buffer_load_dwordx4 {v(OB+4*p,4)}, v2, {WSR}, s10 offen sc1", p)
            a("s_mul_i32 s10, s14, 3072")
            va = 10 + 2 * (p & 1)
            a(f"v_add_u32 v{va}, s10, v4")
            a(f"v_add_u32 v{va+1}, s10, v5")
            if p == 0: st(13)
            wreads(p, va, 0)
        else:
            for e in range(4):
                a(f"s_add_u32 s10, s9, {e*8192}")
                vm.issue(f"buffer_load_dword v{OB+32+e}, v3, {WSR}, s10 offen sc1", p)
            a(f"s_mul_i32 s10, s7, {(-7*6144) & 0xffffffff}")
            a(f"s_add_u32 s10, s10, {16*6144}")
            a("v_add_u32 v10, s10, v4")
            a("v_add_u32 v11, s10, v5")
            wreads(p, 10, 0)
    for p in range(LA): pick(p)
    for p in range(9):
        if p + LA < 9: pick(p + LA)
        if p + LA == 7: pass
        vm.wait(p); lg.wait(p)
        if p == 8:
            a("s_cmp_eq_u32 s7, 0")
            a("s_cbranch_scc1 MD_NB")
            a("s_barrier")
            q = WB + ((8 + 1) % NS) * 24
            assert q == PB or True
            for t in range(6): a(f"ds_read_b128 {v(PBD(WB, NS)+4*t,4)}, v7 offset:{1024*t}")
            a.label("MD_NB")
        for t in range(6):
            cc = "0" if p == 0 else v(AB + 4 * t, 4)
            a(f"v_mfma_f32_16x16x32_bf16 {v(AB+4*t,4)}, {v(WB+(p%NS)*24+t*4,4)}, {v(OB+4*p,4)}, {cc}")
    a("s_branch MD_END")
    for L, back in rare:
        a.label(L)
        a("s_andn2_b32 exec_lo, 0xffff, s12")
        a("s_mov_b32 exec_hi, 0")
        a(f"buffer_load_dwordx2 v[16:17], v6, {WSR}, 0 offen sc1")
        a("s_add_u32 s58, s58, 1")
        a("s_waitcnt vmcnt(0)")
        a(f"v_cmp_eq_u64 vcc, {TAG}, v[16:17]")
        a("s_mov_b64 exec, -1")
        a(f"s_cmp_lt_u32 s58, {SPIN}")
        a("s_cselect_b32 s14, 0, 0xffff")
        a("s_or_b32 s12, s12, s14")
        a("s_or_b32 s12, s12, vcc_lo")
        a(f"s_branch {back}")
    a.label("MD_END")

def PBD(WB, NS): return WB + 120

def m_post(a, st):
    RS3 = 208
    a.label("M_POST")
    a("s_mov_b32 s63, s7")
    a("s_setprio 0")
    a("s_cmp_ge_u32 s2, 192")
    a("s_cbranch_scc1 M_STAGE3")
    a("s_and_b32 s4, s2, 7")
    a("s_bfe_u32 s5, s2, 0x20003")
    a("s_lshl_b32 s6, s4, 2")
    a("s_add_u32 s6, s6, s5")
    a("s_lshl_b32 s6, s6, 2")
    a("s_add_u32 s6, s6, s3")
    a("s_lshr_b32 s7, s15, 2")
    a("v_and_b32 v14, 15, v1")
    a("v_lshrrev_b32 v15, 4, v1")
    a("v_lshlrev_b32 v2, 4, v1")
    a("v_lshlrev_b32 v3, 15, v15")
    a("v_lshl_add_u32 v3, v14, 2, v3")
    a("s_lshl_b32 s8, s6, 14")
    a(f"s_mul_i32 s9, s7, {8192 if DYN else 9216}")
    a("s_add_u32 s8, s8, s9")
    a(f"s_add_u32 s8, s8, {W_OM}")
    a("s_lshl_b32 s9, s6, 6")
    a(f"s_add_u32 s9, s9, {W_OT}")
    a("v_lshrrev_b32 v4, 1, v15")
    a("v_lshlrev_b32 v4, 4, v4")
    a("v_and_b32 v5, 1, v15")
    a("v_lshl_add_u32 v4, v5, 2, v4")
    a("v_lshrrev_b32 v6, 2, v14")
    a("v_add_u32 v4, v4, v6")
    a("v_mul_u32_u24 v4, 192, v4")
    a("v_and_b32 v6, 3, v14")
    a("v_lshl_add_u32 v4, v6, 3, v4")
    a("v_lshl_add_u32 v4, v5, 5, v4")
    a("v_xor_b32 v5, 32, v4")
    a(f"s_mul_i32 s10, s7, {(8 if DYN else 9)*6144}")
    a(f"s_add_u32 s10, s10, {L_W2}")
    a("v_add_u32 v4, s10, v4")
    a("v_add_u32 v5, s10, v5")
    a("s_lshl_b32 s10, s4, 12")
    a(f"s_add_u32 s10, s10, {W_FO}")
    a("v_lshl_add_u32 v6, v1, 7, s10")
    v_swap23(a, 8, 14, 9)
    a(f"v_mul_u32_u24 v8, {RS3}, v8")
    a("v_lshl_add_u32 v8, v15, 3, v8")
    a(f"s_mul_i32 s10, s3, {16*RS3}")
    a(f"s_add_u32 s10, s10, {L_A + 24576}")
    a("v_add_u32 v8, s10, v8")
    OB = 32; AB = OB + 36; WB = AB + 24; EA = 20; NPRE = 6
    for j in range(3):
        a(f"v_add_u32 v9, {64*j}, v1")
        a("v_mul_u32_u24 v10, 171, v9")
        a("v_lshrrev_b32 v10, 11, v10")
        a("v_mul_u32_u24 v11, 12, v10")
        a("v_sub_u32 v11, v9, v11")
        a("v_lshlrev_b32 v11, 4, v11")
        a(f"v_mul_u32_u24 v12, {RS3}, v10")
        a(f"v_add3_u32 v{EA+j}, v12, v11, s10")
        a("v_mul_u32_u24 v12, 2304, v10")
        a(f"v_add_u32 v{EA+3+j}, v12, v11")
    a("s_mul_i32 s11, s6, 36864")
    a("s_lshr_b32 s10, s2, 5")
    a("s_mul_i32 s10, s10, 192")
    a("s_add_u32 s11, s11, s10")
    a("s_mul_i32 s10, s3, 6144")
    a(f"s_add_u32 s10, s10, {L_A}")
    a("v_add_u32 v7, s10, v2")
    srd(a, 44, P_OUT, 2048 * 2304)
    a("s_waitcnt vmcnt(0) lgkmcnt(0)")
    st(12)
    a("s_barrier")
    o_flag(a)
    if DYN:
        gemm2_dyn(a, st, OB, AB, WB, EA)
        a("s_branch MG_FIN")
    def rdw(q, t):
        r = WB + (q % NPRE) * 24 + t * 4
        return [f"ds_read_b64_tr_b16 {v(r+2*rr,2)}, v{4+(t&1)} offset:{q*6144 + rr*1536 + 64*(t>>1)}" for rr in range(2)]
    a("s_cmp_lg_u32 s15, 0")
    a("s_cbranch_scc1 MG_PRE")
    poll_flags(a, 6, 16, "-1", "0")
    a("s_branch MG_W")
    a.label("MG_PRE")
    for q in range(NPRE):
        for t in range(6):
            for x in rdw(q, t): a(x)
        a("s_waitcnt lgkmcnt(3)")
    a("s_cmp_eq_u32 s15, 0")
    a("s_cbranch_scc1 MG_GO")
    a.label("MG_W")
    a("s_barrier")
    st(13)
    a("s_cmp_lg_u32 s7, 0")
    a("s_cbranch_scc1 MG_TAIL")
    a("s_add_u32 s10, s8, 7168")
    a(f"buffer_load_dwordx4 {v(OB+28,4)}, v2, {WSR}, s10 offen sc1")
    a(f"buffer_load_dwordx4 {v(OB+32,4)}, v2, {WSR}, s10 offen offset:1024 sc1")
    a("s_branch MG_MAIN")
    a.label("MG_TAIL")
    for z in range(2):
        for e in range(4):
            a(f"s_add_u32 s10, s9, {(16*z+e)*8192}")
            a(f"buffer_load_dword v{OB+28+4*z+e}, v3, {WSR}, s10 offen sc1")
    a.label("MG_MAIN")
    for q in range(7):
        if q == 4: a("s_add_u32 s8, s8, 4096")
        a(f"buffer_load_dwordx4 {v(OB+4*q,4)}, v2, {WSR}, s8 offen offset:{1024*(q&3)} sc1")
    a("s_cmp_eq_u32 s15, 0")
    a("s_cbranch_scc1 MG_PRE")
    a.label("MG_GO")
    if opt("gp", 1):
        a("s_cmp_lg_u32 s7, 0")
        a("s_cbranch_scc1 MG_GP")
        a("s_setprio 2")
        a.label("MG_GP")
    PB = WB + (120 if DYN else 72)
    a("s_waitcnt lgkmcnt(0)")
    lg = LgTrack(a)
    for q in range(10):
        if q < 7: a(f"s_waitcnt vmcnt({6 - q})")
        if q == NPRE: lg.drain()
        if q == opt("bq", 8):
            a("s_cmp_eq_u32 s7, 0")
            a("s_cbranch_scc1 MG_NB")
            a("s_barrier")
            for t in range(6): a(f"ds_read_b128 {v(PB+4*t,4)}, v7 offset:{1024*t}")
            a.label("MG_NB")
        if q == 9: break
        for t in range(6):
            cc = "0" if q == 0 else v(AB + 4 * t, 4)
            a(f"v_mfma_f32_16x16x32_bf16 {v(AB+4*t,4)}, {v(WB+(q%NPRE)*24+t*4,4)}, {v(OB+4*q,4)}, {cc}")
            if q + NPRE < 9:
                if len(lg.q) > 12: lg.wait(lg.q[1])
                for x in rdw(q + NPRE, t): lg.issue(x, (q + NPRE, t))
    a.label("MG_FIN")
    st(14)
    a("s_cmp_lg_u32 s7, 0")
    a("s_cbranch_scc1 MG_K0")
    for t in range(6): a(f"ds_write_b128 v7, {v(AB+4*t,4)} offset:{1024*t}")
    a("s_waitcnt lgkmcnt(0)")
    a("s_barrier")
    a("s_branch M_END")
    a.label("MG_K0")
    a("s_waitcnt lgkmcnt(0)")
    for t in range(6):
        for i in range(4): a(f"v_add_f32 v{AB+4*t+i}, v{AB+4*t+i}, v{PB+4*t+i}")
        a(f"v_cvt_pk_bf16_f32 v{OB+2*t}, v{AB+4*t}, v{AB+4*t+1}")
        a(f"v_cvt_pk_bf16_f32 v{OB+2*t+1}, v{AB+4*t+2}, v{AB+4*t+3}")
        a(f"ds_write_b64 v8, {v(OB+2*t,2)} offset:{32*t}")
    for j in range(3): a(f"ds_read_b128 {v(OB+16+4*j,4)}, v{EA+j}")
    for j in range(3):
        a(f"s_waitcnt lgkmcnt({2-j})")
        a(f"buffer_store_dwordx4 {v(OB+16+4*j,4)}, v{EA+3+j}, s[44:47], s11 offen {opt('of2', 'sc0 sc1 nt')}")
    a("s_branch M_END")
    a.label("M_STAGE3")
    task_map(a)
    a("v_and_b32 v10, 7, v1")
    a("v_lshrrev_b32 v11, 3, v1")
    a("v_xor_b32 v12, v10, v11")
    a("v_lshlrev_b32 v2, 15, v11")
    a("v_lshl_add_u32 v2, v12, 4, v2")
    a("s_lshl_b32 s8, s6, 18")
    a("s_lshl_b32 s9, s7, 7")
    a("s_add_u32 s8, s8, s9")
    a(f"s_add_u32 s8, s8, {W_Y}")
    a("s_lshl_b32 s9, s15, 13")
    a("v_lshl_add_u32 v3, v10, 3, v12")
    a("v_lshl_add_u32 v3, v3, 4, s9")
    a("s_lshl_b32 s10, s7, 3")
    a("v_add_u32 v4, s10, v11")
    a("v_mul_u32_u24 v4, 9216, v4")
    a("s_lshl_b32 s10, s6, 7")
    a("v_lshl_add_u32 v5, v10, 4, s10")
    a("v_lshl_add_u32 v6, v4, 1, v5")
    a("v_add_u32 v4, v4, v5")
    a("v_add_u32 v5, 4608, v4")
    a("s_lshl_b32 s10, s6, 14")
    a("s_lshr_b32 s11, s7, 4")
    a("s_lshl_b32 s11, s11, 7")
    a("s_add_u32 s10, s10, s11")
    a(f"s_add_u32 s10, s10, {W_FY}")
    a("v_lshl_add_u32 v8, v1, 8, s10")
    srd(a, 44, P_OUT, 2048 * 2304)
    a("s_waitcnt vmcnt(0)")
    st(12)
    a("s_barrier")
    o_flag(a)
    a("s_cmp_ge_u32 s5, 288")
    a("s_cbranch_scc1 M_END")
    QB = 144; YB = 16; YF = YB + 32; QF = YF + 64
    poll_flags(a, 8, 14, "-1", "-1")
    st(13)
    for jj in range(8):
        a(f"s_add_u32 m0, s9, {1024*jj}")
        a(f"s_add_u32 s10, s8, {4096*jj}")
        a(f"buffer_load_dwordx4 v2, {WSR}, s10 offen sc1 lds")
    a("s_mov_b32 s11, 0xffff0000")
    a("s_waitcnt vmcnt(0)")
    for jj in range(8): a(f"ds_read_b128 {v(YB+4*jj,4)}, v3 offset:{1024*jj}")
    for jj in range(8):
        a(f"s_waitcnt lgkmcnt({7-jj})")
        for w in range(4):
            a(f"v_lshlrev_b32 v{YF+(2*w)*8+jj}, 16, v{YB+4*jj+w}")
            a(f"v_and_b32 v{YF+(2*w+1)*8+jj}, s11, v{YB+4*jj+w}")
    for r in range(8):
        q = QF + (r & 1) * 8
        for p in range(4):
            a(f"v_lshlrev_b32 v{q+2*p}, 16, v{QB+4*r+p}")
            a(f"v_and_b32 v{q+2*p+1}, s11, v{QB+4*r+p}")
        for p in range(8):
            a(f"v_mul_f32 v{q+p}, v{q+p}, v{YF+8*r+p}")
        for p in range(4):
            a(f"v_cvt_pk_bf16_f32 v{QB+4*r+p}, v{q+2*p}, v{q+2*p+1}")
        a(f"s_movk_i32 s10, {1152 + 2304*r}")
        a(f"buffer_store_dwordx4 {v(QB+4*r,4)}, v6, s[44:47], s10 offen {opt('of', 'sc0 sc1 nt')}")
    a.label("M_END")
    st.flush()
    a.label("M_EXIT")
    a("s_endpgm")

def gmap(a):
    if LOC:
        a("s_bfe_u32 s60, s2, 0x30003")
        a("s_lshr_b32 s4, s2, 6")
        a("s_and_b32 s5, s2, 3")
        a("s_and_b32 s14, s2, 4")
        a("s_lshl1_add_u32 s14, s14, s60")
        a("s_lshl2_add_u32 s6, s14, s3")
        a("s_lshl2_add_u32 s14, s4, s5")
        a("s_mul_i32 s7, s14, 288")
        return
    a("s_and_b32 s12, s2, 7")
    a("s_lshr_b32 s13, s2, 3")
    a("s_and_b32 s60, s13, 3")
    a("s_lshr_b32 s61, s13, 2")
    a("s_lshr_b32 s14, s12, 1")
    a("s_lshl_b32 s14, s14, 2")
    a("s_add_u32 s14, s14, s60")
    a("s_lshl_b32 s6, s14, 2")
    a("s_add_u32 s6, s6, s3")
    if opt("map2", 0):
        a("s_lshr_b32 s4, s61, 1")
        a("s_add_u32 s4, s4, 1")
        a("s_cmp_eq_u32 s4, 3")
        a("s_cselect_b32 s4, 0, s4")
        a("s_and_b32 s14, s12, 1")
        a("s_lshl_b32 s14, s14, 1")
        a("s_and_b32 s5, s61, 1")
        a("s_add_u32 s14, s14, s5")
        a("s_lshl2_add_u32 s14, s4, s14")
    else:
        a("s_and_b32 s14, s12, 1")
        a("s_mul_i32 s14, s14, 6")
        a("s_add_u32 s14, s14, s61")
    a("s_lshr_b32 s4, s14, 2")
    a("s_and_b32 s5, s14, 3")
    a("s_mul_i32 s7, s14, 288")

def mega():
    a = Asm()
    st = St(a)
    st(0)
    prologue(a)
    a("v_and_b32 v1, 63, v0")
    a("v_lshrrev_b32 v13, 6, v0")
    a("v_readfirstlane_b32 s15, v13")
    a("s_cmp_ge_u32 s2, 256")
    a("s_cbranch_scc1 M_EXIT")
    if STAMP: a("v_mov_b32 v255, 0")
    a("s_and_b32 s3, s15, 3")
    a("s_cmp_ge_u32 s2, 192")
    a("s_cbranch_scc1 M_S1")
    gmap(a)
    a("s_cmp_lt_u32 s15, 4")
    a("s_cbranch_scc1 M_GC")
    g_loader(a, st)
    a.label("M_GC")
    g_compute(a, st)
    a.label("M_S1")
    g_stage1(a, st)
    m_conv(a, st, 1)
    m_attn(a, st)
    m_post(a, st)
    return a

def bench_attn():
    a = Asm()
    st = St(a)
    st(0)
    prologue(a)
    a("v_and_b32 v1, 63, v0")
    a("v_lshrrev_b32 v13, 6, v0")
    a("v_readfirstlane_b32 s15, v13")
    a("v_mov_b32 v255, 0")
    a("s_and_b32 s3, s15, 3")
    a("s_waitcnt lgkmcnt(0)")
    srd(a, 40, P_WS, W_END)
    tab_load(a)
    st(1)
    for i in range(4): a(f"v_mov_b32 v{4+i}, 0")
    a("v_lshlrev_b32 v2, 4, v0")
    a(f"v_add_u32 v2, {L_A}, v2")
    for i in range(6): a(f"ds_write_b128 v2, v[4:7] offset:{8192*i}")
    a("s_waitcnt vmcnt(0) lgkmcnt(0)")
    aprep(a)
    for r in (118, 125, 126, 128): a(f"v_mov_b32 v{r}, 0")
    a("s_mov_b32 s29, 0"); a("s_mov_b32 s101, 0"); a("s_mov_b64 s[56:57], 1")
    if not opt("bw2", 0): a("s_mov_b32 s60, 9")
    a("v_mov_b32 v251, 1")
    a("ds_write_b32 v239, v251")
    a("s_waitcnt lgkmcnt(0)")
    a(f"s_setprio {3 - opt('pf', 2)}")
    a("s_cmp_lt_u32 s15, 4")
    a("s_cbranch_scc1 BA")
    a(f"s_setprio {opt('pf', 2)}")
    a.label("BA")
    a("s_barrier")
    full = Asm(); m_attn(full, St(full))
    i0 = [i for i, x in enumerate(full.L) if x.label == "MT_GO"][0]
    a.L += full.L[i0:]
    a.label("M_POST")
    st.flush()
    a("s_endpgm")
    return a

NOTES = """;
;  phase 1  WG<192: QKV projection tile 128x144 (4 MFMA waves + 4 LDS-DMA waves); WG>=192: kv = shiftconv(k)*v, transposed
"""

def tail_text():
    w = table_words()
    t = '.p2align 8\n.fill 1024, 4, 0xbf810000\n.type M_TAB,@object\nM_TAB:\n'
    for i in range(0, len(w), 8): t += ".long " + ", ".join(hex(x) for x in w[i:i+8]) + "\n"
    t += f".size M_TAB, {4*len(w)}\n"
    return t

if __name__ == "__main__":
    HEADER = open(f"cdna_kernels/{NAME}.s.ref").read().split("; Override")[0]
    nm = opt("name", "mega")
    c, d = kernel_text(NAME + "_kernel", bench_attn() if opt("bench", 0) else mega(), "-v" in sys.argv)
    txt = HEADER + f"; @launch grid=({opt('grid', 256)},1,1) block=({opt('blk', 512)},1,1) lds={LDS_ALL}\n" + NOTES + '.amdgcn_target "amdgcn-amd-amdhsa--gfx950"\n.text\n' + c
    txt += tail_text() + '.section .rodata,"a"\n' + d
    open(f"dev/{nm}_st.s" if STAMP else f"dev/{nm}.s", "w").write(txt)
```
